```python
import torch

def _softmax(x, axis=-1):
    return torch.softmax(x, dim=axis)
def _gelu(x):
    return torch.nn.functional.gelu(x, approximate="tanh")
def _silu(x):
    return torch.nn.functional.silu(x)
def _sigmoid(x):
    return torch.sigmoid(x)
def _layernorm(x, axis=-1, eps=1e-5):
    m = x.mean(dim=axis, keepdim=True)
    v = x.var(dim=axis, keepdim=True, unbiased=False)
    return (x - m) / torch.sqrt(v + eps)
def _scatter_add(tgt, idx, src, axis=0):
    return tgt.clone().index_add_(axis, idx, src)
def _segment_sum(src, seg, n):
    out = torch.zeros((n,) + src.shape[1:], dtype=src.dtype)
    return out.index_add_(0, seg, src)
def _pad(x, pw):
    flat = tuple(v for pair in reversed(pw) for v in pair)
    return torch.nn.functional.pad(x, flat)

kernel_name = 'concat_heads__ssm_conv_h3__sliding_block__prompt'

def setup_inputs():

    _w = (lambda a: (lambda t: t.to(torch.bfloat16) if t.is_floating_point() else t)(torch.as_tensor(a)))
    def _A_setup():
        B, S, D = 1, 2048, 512
        ks = 4
        return {
            "q": _w((lambda *s: torch.randn(*s, dtype=torch.bfloat16) * 0.05)(B, S, D)),
            "k": _w((lambda *s: torch.randn(*s, dtype=torch.bfloat16) * 0.8)(B, S, D)),
            "v": _w((lambda *s: torch.randn(*s, dtype=torch.bfloat16) * 0.8)(B, S, D)),
            "shift_k": _w((lambda *s: torch.randn(*s, dtype=torch.bfloat16) * 0.8)(D, ks) * 0.5),
            "ssm_k": _w((lambda *s: torch.randn(*s, dtype=torch.bfloat16) * 1.6)(D, S) * (1.0 / S ** 0.5)),
            "ssm_D": _w((lambda *s: torch.randn(*s, dtype=torch.bfloat16) * 0.8)(D)),
        }
    _A_in = _A_setup()

    def _B_setup():
        B, S, D = 1, 2048, 512
        return {
            "x": _w((lambda *s: torch.randn(*s, dtype=torch.bfloat16) * 0.2)(B, S, D)),
            "wqkv": _w((lambda *s: torch.randn(*s, dtype=torch.bfloat16) * 0.2)(D, 3 * D)),
            "wo": _w((lambda *s: torch.randn(*s, dtype=torch.bfloat16) * 0.05)(D, D)),
        }
    _B_in = _B_setup()

    return {
        "A_q": _A_in["q"],
        "A_k": _A_in["k"],
        "A_v": _A_in["v"],
        "A_shift_k": _A_in["shift_k"],
        "A_ssm_k": _A_in["ssm_k"],
        "A_ssm_D": _A_in["ssm_D"],
        "B_x": _B_in["x"],
        "B_wqkv": _B_in["wqkv"],
        "B_wo": _B_in["wo"],
    }

def reference(A_q, A_k, A_v, A_shift_k, A_ssm_k, A_ssm_D, B_x, B_wqkv, B_wo):
    def _A_ref(q, k, v, shift_k, ssm_k, ssm_D):
        B, S, D = q.shape
        ks = shift_k.shape[-1]
        k_pad = _pad(k, ((0, 0), (ks - 1, 0), (0, 0)))
        k_shift = torch.zeros_like(k)
        for t in range(ks):
            k_shift = k_shift + k_pad[:, t:t + S, :] * shift_k[:, ks - 1 - t][None, None, :]
        kv = k_shift * v
        L = 2 * S
        kv_pad = _pad(kv, ((0, 0), (0, S), (0, 0)))
        kf_pad = _pad(ssm_k, ((0, 0), (0, S)))
        kv_f = (lambda x, axes=(-2,-1): torch.fft.rfft2(x.float(), dim=axes))(kv_pad[:, None, :, :], axes=(1, 2))
        kf_f = (lambda x, axes=(-2,-1): torch.fft.rfft2(x.float(), dim=axes))(kf_pad[:, None, :], axes=(1, 2))
        kf_f = (lambda x, *d: x.permute(*d))(kf_f, 1, 2, 0)
        y_f = kv_f * kf_f[None, :, :, :]
        y = (lambda x, s, axes=(-2,-1): torch.fft.irfft2(x, s=s, dim=axes).to(torch.bfloat16))(y_f, (1, L), axes=(1, 2))[:, 0, :S, :]
        y = y + kv * ssm_D[None, None, :]
        return q * y

    def _B_ref(x, wqkv, wo):
        B, S, D = x.shape
        H = 32; Dh = D // H; W = 256
        qkv = (lambda x, *d: x.permute(*d))((x @ wqkv).reshape(B, S, 3, H, Dh), 2, 0, 3, 1, 4)
        q, k, v = qkv[0], qkv[1], qkv[2]
        scores = torch.einsum("bhqd,bhkd->bhqk", q, k) * (Dh ** -0.5)
        idx = torch.arange(S)
        mask = (idx[:, None] - idx[None, :] >= 0) & (idx[:, None] - idx[None, :] < W)
        scores = torch.where(mask[None, None], scores, -1e9)
        p = _softmax(scores, axis=-1)
        o = torch.einsum("bhqk,bhkd->bhqd", p, v)
        return (lambda x, *d: x.permute(*d))(o, 0, 2, 1, 3).reshape(B, S, D) @ wo

    a = _A_ref(A_q, A_k, A_v, A_shift_k, A_ssm_k, A_ssm_D)
    b = _B_ref(B_x, B_wqkv, B_wo)
    return torch.concatenate([a, b], axis=-1)
```

```python
import re

class Asm:
    def __init__(self):
        self.lines = []
    def __call__(self, s):
        for ln in s.strip("\n").split("\n"):
            ln = ln.strip()
            if ln: self.lines.append(ln)
    def label(self, n): self.lines.append(n + ":")
    def c(self, s): self.lines.append("; " + s)
    def text(self):
        out = []
        for ln in self.lines:
            out.append(ln if (ln.endswith(":") or ln.startswith(".")) else "    " + ln)
        return "\n".join(out) + "\n"

def v(i, n=1): return "v%d" % i if n == 1 else "v[%d:%d]" % (i, i + n - 1)
def s(i, n=1): return "s%d" % i if n == 1 else "s[%d:%d]" % (i, i + n - 1)

_reg = re.compile(r"\b([vs])(\d+)\b|\b([vs])\[(\d+):(\d+)\]|\b(vcc|exec|m0)\b")
def regs(op):
    out = set()
    for m in _reg.finditer(op):
        if m.group(1): out.add((m.group(1), int(m.group(2))))
        elif m.group(3):
            for i in range(int(m.group(4)), int(m.group(5)) + 1): out.add((m.group(3), i))
        else: out.add((m.group(6), 0))
    return out

TRANS = ("v_exp_f32", "v_log_f32", "v_rcp_f32", "v_rsq_f32", "v_sqrt_f32")
def parse(ln):
    ln = ln.split(";")[0].strip()
    if not ln or ln.endswith(":") or ln.startswith("."): return None
    p = ln.split(None, 1)
    op = p[0]; ops = [x.strip() for x in p[1].split(",")] if len(p) > 1 else []
    d = dict(op=op, ln=ln, W=set(), R=set(), kind="other", ws=1)
    if op == "s_nop": d["ws"] = int(ops[0], 0) + 1; return d
    if op.startswith("v_mfma"):
        d["kind"] = "mfma"; d["W"] = regs(ops[0]); d["A"] = regs(ops[1]) | regs(ops[2]); d["C"] = regs(ops[3]); d["R"] = d["A"] | d["C"]
        d["passes"] = 8 if "32x32" in op else 4
    elif op.startswith("v_"):
        d["kind"] = "valu"
        if op.startswith("v_permlane") and "swap" in op:
            d["W"] = regs(ops[0]) | regs(ops[1]); d["R"] = set(d["W"])
        else:
            d["W"] = regs(ops[0]); d["R"] = set().union(*[regs(o) for o in ops[1:]]) if len(ops) > 1 else set()
            if op.startswith(("v_fmac", "v_pk_fmac")): d["R"] |= d["W"]
            if op.startswith(("v_add_co", "v_sub_co", "v_addc_co")): d["W"] |= regs(ops[1])
    elif op.startswith("ds_"):
        d["kind"] = "ds"
        if op.startswith("ds_read") or op.startswith("ds_bperm"):
            d["W"] = regs(ops[0]); d["R"] = set().union(*[regs(o) for o in ops[1:]])
        else: d["R"] = set().union(*[regs(o) for o in ops])
    elif op.startswith(("buffer_", "global_")):
        d["kind"] = "vmem"
        if op in ("buffer_wbl2", "buffer_inv"): return d
        if " lds" in ln: d["R"] = set().union(*[regs(o) for o in ops]) | {("m0", 0)}; d["dma"] = True
        elif "load" in op: d["W"] = regs(ops[0]); d["R"] = set().union(*[regs(o) for o in ops[1:]])
        else:
            d["R"] = set().union(*[regs(o) for o in ops])
            if "x4" in op or "x3" in op: d["wide"] = regs(ops[0] if op.startswith("buffer") else ops[1])
    elif op.startswith("s_"):
        d["kind"] = "salu"
        if op.startswith(("s_cmp", "s_cbranch", "s_branch", "s_wait", "s_barrier", "s_endpgm", "s_sleep", "s_setprio", "s_bitcmp")):
            d["R"] = set().union(*[regs(o) for o in ops]) if ops else set()
        else:
            d["W"] = regs(ops[0]); d["R"] = set().union(*[regs(o) for o in ops[1:]]) if len(ops) > 1 else set()
            if "saveexec" in op: d["W"] |= {("exec", 0)}
    return d

def need(p, c):
    n = 0
    pk, ck = p["kind"], c["kind"]
    vW = {r for r in p["W"] if r[0] == "v"}
    sW = {r for r in p["W"] if r[0] in ("s", "vcc")}
    if pk == "valu":
        if ck == "mfma" and vW & c["R"]: n = max(n, 2)
        if ck == "valu" and c["op"].startswith("v_permlane") and vW & c["R"]: n = max(n, 2)
        if ck == "valu" and ("dpp" in c["ln"] or "row_" in c["ln"] or "quad_perm" in c["ln"]) and vW & c["R"]: n = max(n, 2)
        if ck == "valu" and c["op"].startswith(("v_readlane", "v_readfirstlane")) and vW & c["R"]: n = max(n, 1)
        if ck == "valu" and sW & c["R"]: n = max(n, 2)
        if ck == "vmem" and sW & c["R"]: n = max(n, 5)
        if ck == "salu" and sW & c["R"]: n = max(n, 1)
        if p["op"].startswith(TRANS) and ck in ("valu", "mfma") and not c["op"].startswith(TRANS) and vW & c["R"]: n = max(n, 1)
    if pk == "mfma":
        P = p["passes"]
        if ck == "mfma":
            if p["W"] & c["A"]: n = max(n, 12 if P == 8 else 8)
            if p["W"] & c["C"]:
                if not (p["W"] == c["C"] and P == c["passes"]): n = max(n, 10 if P == 8 else 6)
        elif ck in ("valu", "ds", "vmem"):
            if p["W"] & (c["R"] | c["W"]): n = max(n, 12 if P == 8 else 8)
        if ck == "valu" and p["C"] & c["W"]: n = max(n, 7 if P == 8 else 3)
    if pk == "salu" and ("m0", 0) in p["W"] and c.get("dma"): n = max(n, 1)
    if pk == "vmem" and "wide" in p and p["wide"] & c["W"]: n = max(n, 2 if ck == "valu" else 1)
    return n

def check(lines):
    ins = []; labels = {}
    for ln in lines:
        t = ln.split(";")[0].strip()
        if t.endswith(":"): labels[t[:-1]] = len(ins); continue
        d = parse(ln)
        if d: ins.append(d)
    errs = []
    def succ(i):
        op = ins[i]["op"]
        out = []
        if op == "s_endpgm": return out
        if op == "s_branch" or op.startswith("s_cbranch"):
            tgt = ins[i]["ln"].split()[1]
            if tgt in labels: out.append(labels[tgt])
            if op == "s_branch": return out
        if i + 1 < len(ins): out.append(i + 1)
        return out
    for i, p in enumerate(ins):
        if p["kind"] not in ("valu", "mfma", "salu", "vmem"): continue
        stack = [(j, 0) for j in succ(i)]; seen = {}
        while stack:
            j, dist = stack.pop()
            if j >= len(ins) or dist >= 12 or seen.get(j, 99) <= dist: continue
            seen[j] = dist
            n = need(p, ins[j])
            if n > dist: errs.append("HAZARD need %d have %d:\n   %s\n   %s" % (n, dist, p["ln"], ins[j]["ln"]))
            for k in succ(j): stack.append((k, dist + ins[j]["ws"]))
    return errs
```

```python
import sys, os
sys.path.insert(0, os.path.dirname(os.path.abspath(__file__)))
from asmlib import Asm, v, s, check

NAME = "concat_heads__ssm_conv_h3__sliding_block__prompt"
MB = 1 << 20
KV_OFF = 0
O_OFF = 4 * MB
FL = 6 * MB
EPA, EPB = FL, FL + 128
F1, F3, F4, F2 = FL + 0x1000, FL + 0x2000, FL + 0x3000, FL + 0x8000
ST_OFF = 7 * MB
WS_SIZE = 8 * MB
TAGINC = 0x9E377900
SPIN = 200000

class Cfg:
    stamps = False
    only = None

def gen(cfg):
    a = Asm()
    nst = [0]
    ST0 = 64
    def stamp(i):
        if cfg.stamps: a("s_memrealtime %s" % s(ST0 + 2 * i, 2))
    def stamp_flush(n, wsrd, wgreg, wvreg):
        if not cfg.stamps: return
        lab = "L_nost%d" % nst[0]; nst[0] += 1
        a("s_cmp_lg_u32 %s, 0" % s(wvreg)); a("s_cbranch_scc1 %s" % lab)
        a("s_waitcnt lgkmcnt(0)")
        a("s_lshl_b32 s60, %s, 7" % s(wgreg)); a("s_add_u32 s60, s60, %d" % ST_OFF)
        a("v_mov_b32 v0, 0")
        for i in range(n):
            a("v_mov_b32 v2, %s" % s(ST0 + 2 * i)); a("v_mov_b32 v3, %s" % s(ST0 + 2 * i + 1))
            a("buffer_store_dwordx2 v[2:3], v0, %s, s60 offen offset:%d" % (s(wsrd, 4), 8 * i))
        a.label(lab)
    def srd(base, size):
        a("s_mov_b32 %s, %d" % (s(base + 2), size)); a("s_mov_b32 %s, 0x20000" % s(base + 3))
    def poll(lab, vaddr, vtmp, wsrd, stag, smask, scnt):
        a("s_mov_b32 %s, %d" % (s(scnt), SPIN))
        a.label(lab)
        a("buffer_load_dword %s, %s, %s, 0 offen sc1" % (v(vtmp), v(vaddr), s(wsrd, 4)))
        a("s_waitcnt vmcnt(0)")
        a("v_cmp_ne_u32 vcc, %s, %s" % (s(stag), v(vtmp)))
        a("s_sub_u32 %s, %s, 1" % (s(scnt), s(scnt)))
        a("s_cmp_eq_u32 %s, 0" % s(scnt))
        a("s_cbranch_scc1 %s_x" % lab)
        a("s_and_b64 vcc, vcc, %s" % s(smask, 2))
        a("s_cbranch_scc1 %s" % lab)
        a.label(lab + "_x")

    a("s_cmp_ge_u32 s2, 512"); a("s_cbranch_scc1 L_end")
    a("s_cmp_ge_u32 s2, 256"); a("s_cbranch_scc1 L_A")
    if cfg.only == "A": a("s_branch L_end")
    SX, SW, SWO, SOUT, SWS = 4, 8, 12, 16, 20
    sG, sJ, sRB, sHQ, sWV, sROT, sT0, sT1, sT2, sT3 = 24, 25, 26, 27, 28, 29, 30, 31, 32, 33
    sM0X, sM0W, sCNT, sQ = 34, 35, 36, 37
    sMASK = 38
    sEP = 40
    sEXV = 48
    stamp(0)
    a("s_load_dwordx2 %s, s[0:1], 48" % s(SX, 2))
    a("s_load_dwordx2 %s, s[0:1], 56" % s(SW, 2))
    a("s_load_dwordx2 %s, s[0:1], 88" % s(SWS, 2))
    a("s_load_dwordx2 %s, s[0:1], 64" % s(SWO, 2))
    a("s_load_dwordx2 %s, s[0:1], 72" % s(SOUT, 2))
    srd(SX, 2 * MB); srd(SW, 3 * MB // 2); srd(SWO, MB // 2); srd(SOUT, 4 * MB); srd(SWS, WS_SIZE)
    a("s_and_b32 %s, s2, 7" % s(sG)); a("s_lshr_b32 %s, s2, 3" % s(sJ))
    a("s_lshr_b32 %s, %s, 3" % (s(sT0), s(sJ)))
    a("s_lshl_b32 %s, %s, 2" % (s(sRB), s(sG))); a("s_add_u32 %s, %s, %s" % (s(sRB), s(sRB), s(sT0)))
    a("s_and_b32 %s, %s, 7" % (s(sHQ), s(sJ)))
    a("s_lshl_b32 %s, %s, 1" % (s(sROT), s(sT0))); a("s_add_u32 %s, %s, %s" % (s(sROT), s(sROT), s(sHQ)))
    XF = 0
    WF = 128
    AK, AV, AQ = 160, 176, 192
    vL, vX0, vX1, vW0, vW1, vWR, vWQ = 208, 209, 210, 211, 212, 213, 214
    vXR = 216
    vT = 220
    vL16 = 236
    a("v_lshrrev_b32 %s, 6, v0" % v(vT)); a("v_and_b32 %s, 63, v0" % v(vL))
    a("v_readfirstlane_b32 %s, %s" % (s(sWV), v(vT)))
    a("v_lshlrev_b32 %s, 4, %s" % (v(vL16), v(vL)))
    a("v_lshrrev_b32 %s, 3, %s" % (v(vT), v(vL)))
    a("v_and_b32 %s, 7, %s" % (v(vT + 1), v(vL)))
    a("v_lshrrev_b32 %s, 4, %s" % (v(vT + 2), v(vL)))
    a("s_lshl_b32 %s, %s, 4" % (s(sT1), s(sWV)))
    a("v_add_u32 %s, %s, %s" % (v(vT + 3), s(sT1), v(vT)))
    a("v_xor_b32 %s, %s, %s" % (v(vT + 4), v(vT + 1), v(vT + 2)))
    a("v_lshlrev_b32 %s, 4, %s" % (v(vT + 4), v(vT + 4)))
    a("s_lshl_b32 %s, %s, 16" % (s(sT2), s(sRB)))
    a("v_lshl_add_u32 %s, %s, 10, %s" % (v(vX0), v(vT + 3), v(vT + 4)))
    a("v_add_u32 %s, %s, %s" % (v(vX0), s(sT2), v(vX0)))
    a("v_xor_b32 %s, 64, %s" % (v(vX1), v(vX0)))
    a("v_add_u32 %s, 8192, %s" % (v(vX1), v(vX1)))
    a("v_and_b32 %s, 1, %s" % (v(vT + 5), v(vT + 2)))
    a("v_lshlrev_b32 %s, 2, %s" % (v(vT + 5), v(vT + 5)))
    a("v_xor_b32 %s, %s, %s" % (v(vT + 5), v(vT + 5), v(vT + 1)))
    a("v_lshlrev_b32 %s, 4, %s" % (v(vT + 5), v(vT + 5)))
    a("v_mul_u32_u24 %s, 3072, %s" % (v(vW0), v(vT + 3)))
    a("s_lshl_b32 %s, %s, 7" % (s(sT2), s(sHQ)))
    a("v_add3_u32 %s, %s, %s, %s" % (v(vW0), v(vW0), v(vT + 5), s(sT2)))
    a("v_add_u32 %s, 24576, %s" % (v(vW1), v(vW0)))
    vWO = 237
    a("v_lshl_add_u32 %s, %s, 10, %s" % (v(vWO), v(vT), v(vT + 5)))
    a("v_add_u32 %s, %s, %s" % (v(vWO), s(sT2), v(vWO)))
    a("s_lshl_b32 %s, %s, 11" % (s(sM0X), s(sWV)))
    a("s_lshl_b32 %s, %s, 12" % (s(sM0W), s(sWV)))
    SLOT = 24576
    def dma_kv(st):
        base = (st % 3) * SLOT
        a("s_add_u32 %s, %s, %d" % (s(sT0), s(sROT), st)); a("s_and_b32 %s, %s, 7" % (s(sT0), s(sT0)))
        a("s_lshl_b32 %s, %s, 7" % (s(sT1), s(sT0)))
        a("s_mul_i32 %s, %s, 196608" % (s(sT2), s(sT0)))
        a("s_add_u32 m0, %s, %d" % (s(sM0X), base))
        a("s_add_u32 %s, %s, 1024" % (s(sT2), s(sT2)))
        a("buffer_load_dwordx4 %s, %s, %s offen lds" % (v(vX0), s(SX, 4), s(sT1)))
        a("s_add_u32 m0, %s, %d" % (s(sM0X), base + 1024)); a("s_nop 0")
        a("buffer_load_dwordx4 %s, %s, %s offen lds" % (v(vX1), s(SX, 4), s(sT1)))
        a("s_add_u32 m0, %s, %d" % (s(sM0W), base + 8192)); a("s_nop 0")
        a("buffer_load_dwordx4 %s, %s, %s offen lds" % (v(vW0), s(SW, 4), s(sT2)))
        a("buffer_load_dwordx4 %s, %s, %s offen offset:1024 lds" % (v(vW0), s(SW, 4), s(sT2)))
        a("s_add_u32 m0, %s, %d" % (s(sM0W), base + 8192 + 2048)); a("s_nop 0")
        a("buffer_load_dwordx4 %s, %s, %s offen lds" % (v(vW1), s(SW, 4), s(sT2)))
        a("buffer_load_dwordx4 %s, %s, %s offen offset:1024 lds" % (v(vW1), s(SW, 4), s(sT2)))
    QCH = {8: [0, 1, 2], 9: [3, 4, 5], 10: [6, 7]}
    def dma_q(st):
        base = (st % 3) * SLOT
        for n, c in enumerate(QCH[st]):
            a("s_add_u32 %s, %s, %d" % (s(sT0), s(sROT), c)); a("s_and_b32 %s, %s, 7" % (s(sT0), s(sT0)))
            a("s_add_u32 m0, %s, %d" % (s(sM0X), base + n * 8192))
            a("s_mul_i32 %s, %s, 196608" % (s(sT2), s(sT0)))
            a("buffer_load_dwordx4 %s, %s, %s offen lds" % (v(vW0), s(SW, 4), s(sT2)))
            a("s_add_u32 m0, %s, %d" % (s(sM0X), base + n * 8192 + 1024)); a("s_nop 0")
            a("buffer_load_dwordx4 %s, %s, %s offen lds" % (v(vW1), s(SW, 4), s(sT2)))
    def dma(st): dma_kv(st) if st < 8 else dma_q(st)
    a("s_waitcnt lgkmcnt(0)")
    dma(0); dma(1); dma(2)
    a("s_lshl_b32 %s, %s, 2" % (s(sT0), s(sRB))); a("s_add_u32 %s, %s, %d" % (s(sT0), s(sT0), EPB))
    a("s_load_dwordx8 %s, %s, %s" % (s(sEP, 8), s(SWS, 2), s(sT0)))
    a("s_and_b32 %s, %s, 1" % (s(sT0), s(sWV)))
    a("s_lshr_b32 %s, %s, 1" % (s(sT1), s(sWV)))
    a("v_and_b32 %s, 31, %s" % (v(vT), v(vL)))
    a("v_lshrrev_b32 %s, 5, %s" % (v(vT + 1), v(vL)))
    a("v_bfe_u32 %s, %s, 1, 3" % (v(vT + 2), v(vL)))
    a("s_lshl_b32 %s, %s, 12" % (s(sT2), s(sT0)))
    a("v_lshl_add_u32 %s, %s, 7, %s" % (v(vT + 3), v(vT), s(sT2)))
    for ks in range(4):
        a("v_add_u32 %s, %d, %s" % (v(vT + 4), 2 * ks, v(vT + 1)))
        a("v_xor_b32 %s, %s, %s" % (v(vT + 4), v(vT + 4), v(vT + 2)))
        a("v_lshl_add_u32 %s, %s, 4, %s" % (v(vXR + ks), v(vT + 4), v(vT + 3)))
    a("v_bfe_u32 %s, %s, 2, 2" % (v(vT + 4), v(vL)))
    a("v_bfe_u32 %s, %s, 3, 1" % (v(vT + 5), v(vL)))
    a("v_xor_b32 %s, %s, %s" % (v(vT + 5), s(sT1), v(vT + 5)))
    a("v_lshlrev_b32 %s, 6, %s" % (v(vT + 5), v(vT + 5)))
    a("v_lshl_add_u32 %s, %s, 7, %s" % (v(vT + 5), v(vT + 4), v(vT + 5)))
    a("v_bfe_u32 %s, %s, 4, 1" % (v(vT + 6), v(vL)))
    a("v_lshl_add_u32 %s, %s, 5, %s" % (v(vT + 5), v(vT + 6), v(vT + 5)))
    a("v_and_b32 %s, 3, %s" % (v(vT + 7), v(vL)))
    a("v_lshl_add_u32 %s, %s, 3, %s" % (v(vT + 5), v(vT + 7), v(vT + 5)))
    a("v_lshl_add_u32 %s, %s, 11, %s" % (v(vWR), v(vT + 1), v(vT + 5)))
    a("v_lshl_add_u32 %s, %s, 10, %s" % (v(vWQ), v(vT + 1), v(vT + 5)))
    a("v_add_u32 %s, 8192, %s" % (v(vWR), v(vWR)))
    a("v_add_u32 %s, 49152, %s" % (v(vWQ + 1), v(vWQ)))
    vKS, vVS, vKL, vVL = 238, 239, 240, 241
    XK, XV, XQ = 73728, 40960, 49152
    a("s_lshl_b32 %s, %s, 1" % (s(sT2), s(sHQ))); a("s_add_u32 %s, %s, %s" % (s(sT2), s(sT2), s(sT1)))
    a("s_lshl_b32 %s, %s, 18" % (s(sT2), s(sT2)))
    a("s_lshl_b32 %s, %s, 1" % (s(sT3), s(sRB))); a("s_add_u32 %s, %s, %s" % (s(sT3), s(sT3), s(sT0)))
    a("s_lshl_b32 %s, %s, 11" % (s(sT3), s(sT3))); a("s_add_u32 %s, %s, %s" % (s(sT2), s(sT2), s(sT3)))
    a("v_add_u32 %s, %s, %s" % (v(vKS), s(sT2), v(vL16)))
    a("v_and_b32 %s, 15, %s" % (v(vT + 8), v(vL)))
    a("v_lshlrev_b32 %s, 4, %s" % (v(vT + 8), v(vT + 8)))
    a("v_lshl_add_u32 %s, %s, 8, %s" % (v(vT + 8), v(vT + 1), v(vT + 8)))
    vVP = 242
    a("v_mov_b32 %s, %s" % (v(vVP), v(vT + 8)))
    a("v_lshl_add_u32 %s, %s, 17, %s" % (v(vVS), v(vT + 6), v(vT + 8)))
    a("v_add_u32 %s, %s, %s" % (v(vVS), s(sT2), v(vVS)))
    a("s_lshl_b32 %s, %s, 12" % (s(sT2), s(sT1))); a("s_lshl_b32 %s, %s, 10" % (s(sT3), s(sT0)))
    a("s_add_u32 %s, %s, %s" % (s(sT2), s(sT2), s(sT3)))
    a("v_add_u32 %s, %s, %s" % (v(vKL), s(sT2), v(vL16)))
    a("v_lshl_add_u32 %s, %s, 11, %s" % (v(vVL), v(vT + 6), v(vT + 8)))
    a("v_add_u32 %s, %s, %s" % (v(vVL), s(sT2), v(vVL)))
    a("v_add_u32 %s, %d, %s" % (v(vKL), XK - 16384, v(vKL)))

    MF32 = "v_mfma_f32_32x32x16_bf16"
    for st in range(8):
        base = (st % 3) * SLOT
        a.c("---- KV stage %d" % st)
        a("s_waitcnt vmcnt(%d)" % (12 if st == 0 else 6))
        a("s_barrier")
        if st == 0: stamp(1)
        for ks in range(4):
            a("ds_read_b128 %s, %s offset:%d" % (v(XF + 16 * st + 4 * ks, 4), v(vXR + ks), base))
            for p in range(2):
                for u in range(2):
                    a("ds_read_b64_tr_b16 %s, %s offset:%d" % (v(WF + 8 * ks + 4 * p + 2 * u, 2), v(vWR), base + 4096 * ks + 1024 * p + 512 * u))
            if ks == 1 and st >= 1: dma(st + 2)
        for ks in range(4):
            a("s_waitcnt lgkmcnt(%d)" % min(15, 15 - 5 * ks))
            x = v(XF + 16 * st + 4 * ks, 4)
            first = (st == 0 and ks == 0)
            a("%s %s, %s, %s, %s" % (MF32, v(AK, 16), v(WF + 8 * ks, 4), x, "0" if first else v(AK, 16)))
            a("%s %s, %s, %s, %s" % (MF32, v(AV, 16), x, v(WF + 8 * ks + 4, 4), "0" if first else v(AV, 16)))
    a.c("---- K/V epilogue")
    stamp(2)
    CV = 220
    a("s_nop 10")
    for i in range(8): a("v_cvt_pk_bf16_f32 %s, %s, %s" % (v(CV + i), v(AK + 2 * i), v(AK + 2 * i + 1)))
    a("s_mov_b32 %s, 131072" % s(sT0))
    a("buffer_store_dwordx4 %s, %s, %s, 0 offen sc1" % (v(CV, 4), v(vKS), s(SWS, 4)))
    a("buffer_store_dwordx4 %s, %s, %s, %s offen sc1" % (v(CV + 4, 4), v(vKS), s(SWS, 4), s(sT0)))
    for i in range(8): a("v_cvt_pk_bf16_f32 %s, %s, %s" % (v(CV + 8 + i), v(AV + 2 * i), v(AV + 2 * i + 1)))
    a("buffer_store_dwordx4 %s, %s, %s, 0 offen offset:1024 sc1" % (v(CV + 8, 4), v(vVS), s(SWS, 4)))
    a("buffer_store_dwordx4 %s, %s, %s, 0 offen offset:1536 sc1" % (v(CV + 12, 4), v(vVS), s(SWS, 4)))
    a("ds_write_b128 %s, %s offset:16384" % (v(vKL), v(CV, 4)))
    a("ds_write_b128 %s, %s offset:%d" % (v(vKL), v(CV + 4, 4), 16384 + 2048))
    for st in (8, 9, 10):
        base = (st % 3) * SLOT
        a.c("---- Q stage %d" % st)
        a("s_waitcnt vmcnt(%d)" % {8: 10, 9: 8, 10: 0}[st])
        a("s_barrier")
        if st == 8:
            dma(10)
            a("ds_write_b128 %s, %s offset:%d" % (v(vVL), v(CV + 8, 4), XV))
            a("ds_write_b128 %s, %s offset:%d" % (v(vVL), v(CV + 12, 4), XV + 512))
        if st == 10:
            a("s_cmp_lg_u32 %s, 0" % s(sWV)); a("s_cbranch_scc1 L_b_nopub2")
            a("v_mov_b32 %s, %s" % (v(vT), s(sEP + 1)))
            for d in range(1, 4): a("v_writelane_b32 %s, %s, %d" % (v(vT), s(sEP + 1 + d), d))
            a("v_add_u32 %s, 0x%x, %s" % (v(vT), TAGINC, v(vT)))
            a("v_and_b32 %s, 0xffffff00, %s" % (v(vT), v(vT)))
            a("s_add_u32 %s, %s, 1" % (s(sT0), s(sRB)))
            a("v_add_u32 %s, %s, %s" % (v(vT + 1), s(sT0), v(vL)))
            a("v_cmp_gt_u32 vcc, 32, %s" % v(vT + 1))
            a("v_lshlrev_b32 %s, 10, %s" % (v(vT + 1), v(vT + 1)))
            a("v_lshl_add_u32 %s, %s, 2, %s" % (v(vT + 1), v(vL), v(vT + 1)))
            a("s_lshl_b32 %s, %s, 7" % (s(sT0), s(sHQ))); a("s_add_u32 %s, %s, %d" % (s(sT0), s(sT0), F2))
            a("s_and_b64 exec, vcc, 15")
            a("s_cbranch_execz L_b_nopub2a")
            a("buffer_store_dword %s, %s, %s, %s offen sc1" % (v(vT), v(vT + 1), s(SWS, 4), s(sT0)))
            a.label("L_b_nopub2a")
            a("s_mov_b64 exec, -1")
            a.label("L_b_nopub2")
            stamp(3)
        nch = len(QCH[st])
        def rd(n):
            for ks in range(4):
                for u in range(2):
                    a("ds_read_b64_tr_b16 %s, %s offset:%d" % (v(WF + 16 * (n & 1) + 4 * ks + 2 * u, 2), v(vWQ + 1 if st == 8 else vWQ), (0 if st == 8 else base) + 8192 * n + 2048 * ks + 512 * u))
        rd(0)
        for n in range(nch):
            if n + 1 < nch: rd(n + 1)
            c = QCH[st][n]
            for ks in range(4):
                rem = (8 if n + 1 < nch else 0) + 6 - 2 * ks
                a("s_waitcnt lgkmcnt(%d)" % rem)
                first = (c == 0 and ks == 0)
                a("%s %s, %s, %s, %s" % (MF32, v(AQ, 16), v(WF + 16 * (n & 1) + 4 * ks, 4), v(XF + 16 * c + 4 * ks, 4), "0" if first else v(AQ, 16)))
    a.c("---- Q epilogue + local exchange")
    KF = 0
    VF = 40
    QF = 120
    S0, S1 = 128, 144
    MD, MBK = 160, 176
    OA = 192
    NM = 208
    PB = 224
    vM, vA, vB2 = 232, 233, 234
    vL2 = 243
    a("v_mov_b32 %s, %s" % (v(vL2), v(vL)))
    a("s_mov_b32 %s, 0x3eb8aa3b" % s(sT0))
    for i in range(80): a("v_mov_b32 %s, 0x3f803f80" % v(VF + i))
    for i in range(16): a("v_mul_f32 %s, %s, %s" % (v(AQ + i), s(sT0), v(AQ + i)))
    for i in range(8): a("v_cvt_pk_bf16_f32 %s, %s, %s" % (v(S0 + i), v(AQ + 2 * i), v(AQ + 2 * i + 1)))
    a("v_subrev_u32 %s, %d, %s" % (v(vA), XK - 16384 - XQ, v(vKL)))
    a("ds_write_b128 %s, %s" % (v(vA), v(S0, 4)))
    a("ds_write_b128 %s, %s offset:2048" % (v(vA), v(S0 + 4, 4)))
    a("s_mov_b32 %s, 0x0000ffff" % s(sEXV)); a("s_mov_b32 %s, 0x0000ffff" % s(sEXV + 1))
    a("v_add_u32 %s, %s, %s" % (v(vA), s(sM0X), v(vL16)))
    a("v_add_u32 %s, %s, %s" % (v(vB2), s(sM0X), v(vVP)))
    a("v_add_u32 %s, %d, %s" % (v(vM), XK - 16384, v(vA)))
    a("s_waitcnt lgkmcnt(0)")
    a("s_barrier")
    stamp(4)
    for t in range(2):
        a("ds_read_b128 %s, %s offset:%d" % (v(QF + 4 * t, 4), v(vA), XQ + 1024 * t))
        a("ds_read_b128 %s, %s offset:%d" % (v(KF + 4 * (8 + t), 4), v(vM), 16384 + 1024 * t))
    a("s_mov_b64 exec, %s" % s(sEXV, 2))
    for t in range(2):
        for u in range(2):
            a("ds_read_b128 %s, %s offset:%d" % (v(VF + 8 * (8 + t) + 4 * u, 4), v(vB2), XV + 1024 * t + 512 * u))
    a("s_mov_b64 exec, -1")
    a("v_and_b32 %s, 31, %s" % (v(vM), v(vL2)))
    a("v_lshrrev_b32 %s, 5, %s" % (v(PB), v(vL2)))
    a("v_lshlrev_b32 %s, 2, %s" % (v(PB), v(PB)))
    a("v_sub_u32 %s, %s, %s" % (v(vM), v(vM), v(PB)))
    a("v_mov_b32 %s, 0xf149f2ca" % v(PB)); a("v_mov_b32 %s, 0" % v(PB + 1))
    for r in range(16):
        a("v_cmp_le_i32 vcc, %d, %s" % (8 * (r // 4) + r % 4, v(vM)))
        a("s_nop 1")
        a("v_cndmask_b32 %s, %s, %s, vcc" % (v(MD + r), v(PB), v(PB + 1)))
        a("v_cndmask_b32 %s, %s, %s, vcc" % (v(MBK + r), v(PB + 1), v(PB)))
    a.c("---- wait for halo")
    sTAG, sNB = 50, 51
    a("s_add_u32 %s, %s, 0x%x" % (s(sTAG), s(sEP), TAGINC)); a("s_and_b32 %s, %s, 0xffffff00" % (s(sTAG), s(sTAG)))
    a("s_min_u32 %s, %s, 4" % (s(sNB), s(sRB)))
    a("s_cmp_lg_u32 %s, 1" % s(sWV)); a("s_cbranch_scc1 L_b_nopoll2")
    a("s_lshl_b32 %s, 1, %s" % (s(sMASK), s(sNB))); a("s_sub_u32 %s, %s, 1" % (s(sMASK), s(sMASK))); a("s_mov_b32 %s, 0" % s(sMASK + 1))
    a("s_lshl_b32 %s, %s, 3" % (s(sT0), s(sRB))); a("s_add_u32 %s, %s, %s" % (s(sT0), s(sT0), s(sHQ)))
    a("s_lshl_b32 %s, %s, 7" % (s(sT0), s(sT0))); a("s_add_u32 %s, %s, %d" % (s(sT0), s(sT0), F2))
    a("v_and_b32 %s, 3, %s" % (v(PB), v(vL2)))
    a("v_lshl_add_u32 %s, %s, 2, %s" % (v(PB), v(PB), s(sT0)))
    poll("L_b_poll2", PB, PB + 1, SWS, sTAG, sMASK, sCNT)
    a.label("L_b_nopoll2")
    a("s_waitcnt lgkmcnt(0)")
    a("s_barrier")
    stamp(5)
    a("s_lshl_b32 %s, %s, 2" % (s(sT0), s(sHQ))); a("s_add_u32 %s, %s, %s" % (s(sT0), s(sT0), s(sWV)))
    a("s_lshl_b32 %s, %s, 17" % (s(sT0), s(sT0)))
    a("s_lshl_b32 %s, %s, 12" % (s(sT1), s(sRB))); a("s_add_u32 %s, %s, %s" % (s(sT0), s(sT0), s(sT1)))
    for blk in range(4):
        a("s_cmp_le_u32 %s, %d" % (s(sNB), blk)); a("s_cbranch_scc1 L_b_halo_done")
        a("s_sub_u32 %s, %s, 4096" % (s(sT0), s(sT0)))
        for t in (1, 0):
            kt = 6 - 2 * blk + t
            a("buffer_load_dwordx4 %s, %s, %s, %s offen offset:%d sc1" % (v(KF + 4 * kt, 4), v(vL16), s(SWS, 4), s(sT0), 2048 * t))
        a("s_mov_b64 exec, %s" % s(sEXV, 2))
        for t in (1, 0):
            kt = 6 - 2 * blk + t
            for u in range(2):
                a("buffer_load_dwordx4 %s, %s, %s, %s offen offset:%d sc1" % (v(VF + 8 * kt + 4 * u, 4), v(vVP), s(SWS, 4), s(sT0), 2048 * t + 1024 + 512 * u))
        a("s_mov_b64 exec, -1")
    a.label("L_b_halo_done")
    a("s_lshl_b32 %s, %s, 14" % (s(sT0), s(sWV)))
    a("s_lshl_b32 %s, %s, 17" % (s(sT1), s(sWV)))
    for i in range(16):
        a("s_add_u32 m0, %s, %d" % (s(sT0), 1024 * i))
        a("s_add_u32 %s, %s, %d" % (s(sT2), s(sT1), 8192 * i))
        a("buffer_load_dwordx4 %s, %s, %s offen lds" % (v(vWO), s(SWO, 4), s(sT2)))
    a("s_waitcnt vmcnt(16)")
    stamp(6)
    sOS = 52
    a("s_lshl_b32 %s, %s, 16" % (s(sOS), s(sRB)))
    a("s_lshl_b32 %s, %s, 2" % (s(sT0), s(sHQ))); a("s_add_u32 %s, %s, %s" % (s(sT0), s(sT0), s(sWV)))
    a("s_lshl_b32 %s, %s, 10" % (s(sT0), s(sT0))); a("s_add_u32 %s, %s, %s" % (s(sOS), s(sOS), s(sT0)))
    a("s_add_u32 %s, %s, %d" % (s(sOS), s(sOS), O_OFF))
    SB = [S0, S1]
    for qt in range(2):
        a.c("---- attention q tile %d (two pass, true max)" % qt)
        a("s_lshl_b32 %s, %s, 1" % (s(sQ), s(sRB))); a("s_add_u32 %s, %s, %d" % (s(sQ), s(sQ), qt))
        q = v(QF + 4 * qt, 4)
        def kf(t): return v(KF + 4 * (qt + 8 - t), 4)
        def cm(t): return v(MD, 16) if t == 0 else (v(MBK, 16) if t == 8 else "0")
        a("v_mov_b32 %s, 0xf149f2ca" % v(vM))
        a("%s %s, %s, %s, %s" % (MF32, v(SB[0], 16), kf(0), q, cm(0)))
        for t in range(9):
            if t < 8: a("%s %s, %s, %s, %s" % (MF32, v(SB[(t + 1) & 1], 16), kf(t + 1), q, cm(t + 1)))
            a("s_nop %d" % (10 if t == 0 else (1 if t < 8 else 1)))
            S = SB[t & 1]
            for i in range(8): a("v_max3_f32 %s, %s, %s, %s" % (v(vM), v(S + 2 * i), v(S + 2 * i + 1), v(vM)))
            if t < 8:
                a("s_cmp_le_u32 %s, %d" % (s(sQ), t)); a("s_cbranch_scc1 L_b_p1done%d" % qt)
        a.label("L_b_p1done%d" % qt)
        a("v_mov_b32 %s, %s" % (v(vA), v(vM))); a("s_nop 1")
        a("v_permlane32_swap_b32 %s, %s" % (v(vM), v(vA)))
        a("v_max_f32 %s, %s, %s" % (v(vM), v(vM), v(vA)))
        for i in range(16): a("v_sub_f32 %s, 0, %s" % (v(NM + i), v(vM)))
        for i in range(16): a("v_sub_f32 %s, %s, %s" % (v(SB[0] + i), v(MD + i), v(vM)))
        a("s_nop 1")
        a("%s %s, %s, %s, %s" % (MF32, v(SB[0], 16), kf(0), q, v(SB[0], 16)))
        for t in range(9):
            S = SB[t & 1]; N = SB[(t + 1) & 1]
            if t < 7: a("%s %s, %s, %s, %s" % (MF32, v(N, 16), kf(t + 1), q, v(NM, 16)))
            if t == 7:
                for i in range(16): a("v_sub_f32 %s, %s, %s" % (v(N + i), v(MBK + i), v(vM)))
                a("s_nop 1")
                a("%s %s, %s, %s, %s" % (MF32, v(N, 16), kf(8), q, v(N, 16)))
            if t == 0: a("s_nop 10")
            kt = qt + 8 - t
            for u in range(2):
                for i in range(8): a("v_exp_f32 %s, %s" % (v(S + 8 * u + i), v(S + 8 * u + i)))
                for i in range(4): a("v_cvt_pk_bf16_f32 %s, %s, %s" % (v(PB + 4 * u + i), v(S + 8 * u + 2 * i), v(S + 8 * u + 2 * i + 1)))
                a("s_nop 1")
                a("%s %s, %s, %s, %s" % (MF32, v(OA, 16), v(VF + 8 * kt + 4 * u, 4), v(PB + 4 * u, 4), "0" if (t == 0 and u == 0) else v(OA, 16)))
            if t < 8:
                a("s_cmp_le_u32 %s, %d" % (s(sQ), t)); a("s_cbranch_scc1 L_b_p2done%d" % qt)
        a.label("L_b_p2done%d" % qt)
        a("s_nop 11")
        a("v_rcp_f32 %s, %s" % (v(vA), v(OA + 8))); a("s_nop 0")
        for i in range(8): a("v_mul_f32 %s, %s, %s" % (v(OA + i), v(vA), v(OA + i)))
        OP = 244 + 4 * qt
        for i in range(4): a("v_cvt_pk_bf16_f32 %s, %s, %s" % (v(OP + i), v(OA + 2 * i), v(OA + 2 * i + 1)))
        a("buffer_store_dwordx4 %s, %s, %s, %s offen sc1" % (v(OP, 4), v(vL16), s(SWS, 4), s(sOS)))
        if qt == 0: a("s_add_u32 %s, %s, 32768" % (s(sOS), s(sOS)))
    stamp(7)
    a.c("---- publish o, wo fragments")
    a("s_waitcnt vmcnt(0)")
    a("s_barrier")
    a("s_lshl_b32 %s, %s, 7" % (s(sT0), s(sRB))); a("s_add_u32 %s, %s, %d" % (s(sT0), s(sT0), F4))
    a("s_cmp_lg_u32 %s, 0" % s(sWV)); a("s_cbranch_scc1 L_b_nopub4")
    a("s_lshl_b32 %s, %s, 2" % (s(sT1), s(sHQ)))
    a("v_mov_b32 %s, %s" % (v(vA), s(sT1))); a("v_mov_b32 %s, %s" % (v(vB2), s(sTAG)))
    a("s_mov_b64 exec, 1")
    a("buffer_store_dword %s, %s, %s, %s offen sc1" % (v(vB2), v(vA), s(SWS, 4), s(sT0)))
    a("s_mov_b64 exec, -1")
    a.label("L_b_nopub4")
    stamp(8)
    WOF, OF, AC = 0, 128, 192
    a("v_bfe_u32 %s, %s, 2, 2" % (v(224), v(vL2)))
    a("v_lshrrev_b32 %s, 5, %s" % (v(225), v(vL2)))
    a("v_lshl_add_u32 %s, %s, 2, %s" % (v(224), v(225), v(224)))
    a("v_lshlrev_b32 %s, 7, %s" % (v(224), v(224)))
    a("v_bfe_u32 %s, %s, 3, 1" % (v(226), v(vL2)))
    a("v_lshl_add_u32 %s, %s, 6, %s" % (v(224), v(226), v(224)))
    a("v_and_b32 %s, 1, %s" % (v(226), v(vL2)))
    a("v_lshl_add_u32 %s, %s, 5, %s" % (v(224), v(226), v(224)))
    a("v_bfe_u32 %s, %s, 4, 1" % (v(226), v(vL2)))
    a("v_lshl_add_u32 %s, %s, 4, %s" % (v(224), v(226), v(224)))
    a("v_bfe_u32 %s, %s, 1, 1" % (v(226), v(vL2)))
    a("v_lshl_add_u32 %s, %s, 3, %s" % (v(224), v(226), v(224)))
    a("s_lshr_b32 %s, %s, 1" % (s(sT1), s(sWV)))
    a("s_lshl_b32 %s, %s, 15" % (s(sT2), s(sT1)))
    a("v_add_u32 %s, %s, %s" % (v(224), s(sT2), v(224)))
    a("v_xor_b32 %s, 64, %s" % (v(226), v(224)))
    for hd in range(16):
        for ct in range(2):
            for u in range(2):
                a("ds_read_b64_tr_b16 %s, %s offset:%d" % (v(WOF + 8 * hd + 4 * ct + 2 * u, 2), v(224 + 2 * ct), 2048 * hd + 1024 * u))
    a("s_cmp_lg_u32 %s, 1" % s(sWV)); a("s_cbranch_scc1 L_b_nopoll4")
    a("s_mov_b32 %s, 0xff" % s(sMASK)); a("s_mov_b32 %s, 0" % s(sMASK + 1))
    a("v_and_b32 %s, 7, %s" % (v(227), v(vL2)))
    a("v_lshl_add_u32 %s, %s, 2, %s" % (v(227), v(227), s(sT0)))
    poll("L_b_poll4", 227, 228, SWS, sTAG, sMASK, sCNT)
    a("s_cmp_lg_u32 %s, 0" % s(sHQ)); a("s_cbranch_scc1 L_b_nopoll4")
    a("s_lshl_b32 %s, %s, 2" % (s(sT2), s(sRB))); a("s_add_u32 %s, %s, %d" % (s(sT2), s(sT2), EPB))
    a("v_mov_b32 %s, %s" % (v(227), s(sT2))); a("v_mov_b32 %s, %s" % (v(228), s(sTAG)))
    a("s_mov_b64 exec, 1")
    a("buffer_store_dword %s, %s, %s, 0 offen sc1" % (v(228), v(227), s(SWS, 4)))
    a("s_mov_b64 exec, -1")
    a.label("L_b_nopoll4")
    a("s_waitcnt lgkmcnt(0)")
    a("s_barrier")
    stamp(9)
    a("s_and_b32 %s, %s, 1" % (s(sT0), s(sWV)))
    a("s_lshl_b32 %s, %s, 16" % (s(sT2), s(sRB))); a("s_lshl_b32 %s, %s, 15" % (s(sT3), s(sT0)))
    a("s_add_u32 %s, %s, %s" % (s(sT2), s(sT2), s(sT3)))
    a("s_lshl_b32 %s, %s, 14" % (s(sT3), s(sT1))); a("s_add_u32 %s, %s, %s" % (s(sT2), s(sT2), s(sT3)))
    a("s_add_u32 %s, %s, %d" % (s(sT2), s(sT2), O_OFF))
    for i in range(16):
        a("buffer_load_dwordx4 %s, %s, %s, %s offen offset:%d sc1" % (v(OF + 4 * i, 4), v(vL16), s(SWS, 4), s(sT2), 1024 * (i & 3)))
        if i & 3 == 3 and i < 15: a("s_add_u32 %s, %s, 4096" % (s(sT2), s(sT2)))
    RS = 272
    a("v_and_b32 %s, 31, %s" % (v(224), v(vL2)))
    a("s_lshl_b32 %s, %s, 1" % (s(sT3), s(sT1))); a("s_add_u32 %s, %s, %s" % (s(sT3), s(sT3), s(sT0)))
    a("s_mul_i32 %s, %s, %d" % (s(sT3), s(sT3), 32 * RS))
    a("v_mul_u32_u24 %s, %d, %s" % (v(224), RS, v(224)))
    a("v_lshl_add_u32 %s, %s, 6, %s" % (v(224), v(225), v(224)))
    a("v_add_u32 %s, %s, %s" % (v(224), s(sT3), v(224)))
    a("v_lshrrev_b32 %s, 3, %s" % (v(226), v(vL2)))
    a("s_lshl_b32 %s, %s, 4" % (s(sT3), s(sWV)))
    a("v_add_u32 %s, %s, %s" % (v(226), s(sT3), v(226)))
    a("v_and_b32 %s, 7, %s" % (v(227), v(vL2)))
    a("v_mul_u32_u24 %s, %d, %s" % (v(228), RS, v(226)))
    a("v_lshl_add_u32 %s, %s, 5, %s" % (v(228), v(227), v(228)))
    a("v_lshlrev_b32 %s, 11, %s" % (v(229), v(226)))
    a("v_lshl_add_u32 %s, %s, 4, %s" % (v(229), v(227), v(229)))
    a("s_lshl_b32 %s, %s, 17" % (s(sT2), s(sRB))); a("s_lshl_b32 %s, %s, 7" % (s(sT3), s(sHQ)))
    a("s_add_u32 %s, %s, %s" % (s(sT2), s(sT2), s(sT3))); a("s_add_u32 %s, %s, 1024" % (s(sT2), s(sT2)))
    a("s_add_u32 %s, %s, 16384" % (s(sT3), s(sT2)))
    for i in range(16):
        a("s_waitcnt vmcnt(%d)" % (15 - i))
        for ct in range(2):
            a("%s %s, %s, %s, %s" % (MF32, v(AC + 16 * ct, 16), v(WOF + 8 * i + 4 * ct, 4), v(OF + 4 * i, 4), "0" if i == 0 else v(AC + 16 * ct, 16)))
    stamp(10)
    a("s_nop 10")
    for ct in range(2):
        for q4 in range(4):
            a("ds_write_b128 %s, %s offset:%d" % (v(224), v(AC + 16 * ct + 4 * q4, 4), 128 * ct + 16 * q4))
    a("s_waitcnt lgkmcnt(0)")
    a("s_barrier")
    for e in range(2):
        for kh in range(2):
            for hf in range(2):
                a("ds_read_b128 %s, %s offset:%d" % (v(16 * e + 8 * kh + 4 * hf, 4), v(228), 8 * RS * e + 64 * RS * kh + 16 * hf))
    for e in range(2):
        a("s_waitcnt lgkmcnt(%d)" % (4 - 4 * e))
        for i in range(8): a("v_add_f32 %s, %s, %s" % (v(16 * e + i), v(16 * e + i), v(16 * e + 8 + i)))
        for i in range(4): a("v_cvt_pk_bf16_f32 %s, %s, %s" % (v(32 + 4 * e + i), v(16 * e + 2 * i), v(16 * e + 2 * i + 1)))
        a("buffer_store_dwordx4 %s, %s, %s, %s offen" % (v(32 + 4 * e, 4), v(229), s(SOUT, 4), s(sT2 if e == 0 else sT3)))
    if cfg.stamps: a("s_waitcnt vmcnt(0)")
    stamp(11)
    stamp_flush(12, SWS, 2, sWV)
    a("s_endpgm")

    a.label("L_A")
    if cfg.only == "B": a("s_branch L_end")
    SK, SV, SQ, SH, SO, SWS = 4, 8, 12, 16, 20, 24
    PSK, PSD = 28, 30
    sG, sJ, sWV, sT0, sT1, sT2, sT3, sEP, sTAG, sCNT = 32, 33, 34, 35, 36, 37, 38, 39, 40, 41
    sMASK = 42
    KT, VT, QT, UL, HB = 0, 9216, 17408, 25600, 34816
    HS, US = 4160, 4608
    OT = 0
    stamp(0)
    a("s_load_dwordx2 %s, s[0:1], 8" % s(SK, 2))
    a("s_load_dwordx2 %s, s[0:1], 16" % s(SV, 2))
    a("s_load_dwordx2 %s, s[0:1], 0" % s(SQ, 2))
    a("s_load_dwordx2 %s, s[0:1], 32" % s(SH, 2))
    a("s_load_dwordx2 %s, s[0:1], 72" % s(SO, 2))
    a("s_load_dwordx2 %s, s[0:1], 88" % s(SWS, 2))
    a("s_load_dwordx2 %s, s[0:1], 24" % s(PSK, 2))
    a("s_load_dwordx2 %s, s[0:1], 40" % s(PSD, 2))
    srd(SK, 2 * MB); srd(SV, 2 * MB); srd(SQ, 2 * MB); srd(SH, 2 * MB); srd(SO, 4 * MB); srd(SWS, WS_SIZE)
    a("s_and_b32 %s, s2, 7" % s(sG)); a("s_bfe_u32 %s, s2, 0x50003" % s(sJ))
    vL, vT = 1, 2
    vD0, vD1, vK0, vK1 = 16, 17, 18, 19
    a("v_lshrrev_b32 %s, 6, v0" % v(vT)); a("v_and_b32 %s, 63, v0" % v(vL))
    a("v_readfirstlane_b32 %s, %s" % (s(sWV), v(vT)))
    a("v_lshrrev_b32 %s, 3, v0" % v(vT + 1))
    a("v_and_b32 %s, 7, v0" % v(vT + 2))
    a("v_xor_b32 %s, %s, %s" % (v(vT + 3), v(vT + 2), v(vT)))
    a("v_lshlrev_b32 %s, 4, %s" % (v(vT + 3), v(vT + 3)))
    a("s_lshl_b32 %s, %s, 16" % (s(sT0), s(sJ))); a("s_lshl_b32 %s, %s, 7" % (s(sT1), s(sG)))
    a("s_add_u32 %s, %s, %s" % (s(sT0), s(sT0), s(sT1)))
    a("v_lshl_add_u32 %s, %s, 10, %s" % (v(vD0), v(vT + 1), v(vT + 3)))
    a("v_add_u32 %s, %s, %s" % (v(vD0), s(sT0), v(vD0)))
    a("v_xor_b32 %s, 64, %s" % (v(vD1), v(vD0))); a("v_add_u32 %s, 32768, %s" % (v(vD1), v(vD1)))
    a("v_subrev_u32 %s, 8192, %s" % (v(vK0), v(vD0))); a("v_subrev_u32 %s, 8192, %s" % (v(vK1), v(vD1)))
    a("s_lshl_b32 %s, %s, 10" % (s(sT2), s(sWV)))
    a("s_waitcnt lgkmcnt(0)")
    a("s_cmp_lg_u32 %s, 0" % s(sWV)); a("s_cbranch_scc1 L_a_nok8")
    a("s_mov_b32 m0, %d" % (KT + 8192)); a("s_mov_b32 %s, %d" % (s(sT3), 7 * 8192))
    a("buffer_load_dwordx4 %s, %s, %s offen lds" % (v(vD0), s(SK, 4), s(sT3)))
    a.label("L_a_nok8")
    for (vo, sr, dst) in ((vK0, SK, KT), (vK1, SK, KT + 4096), (vD0, SV, VT), (vD1, SV, VT + 4096)):
        a("s_add_u32 m0, %s, %d" % (s(sT2), dst)); a("s_nop 0")
        a("buffer_load_dwordx4 %s, %s, 0 offen lds" % (v(vo), s(sr, 4)))
    TP, vDD = 20, 24
    a("s_lshl_b32 %s, %s, 9" % (s(sT0), s(sG)))
    a("v_lshl_add_u32 %s, %s, 4, %s" % (v(vT + 4), v(vT + 1), s(sT0)))
    a("global_load_dwordx4 %s, %s, %s" % (v(TP, 4), v(vT + 4), s(PSK, 2)))
    a("v_lshrrev_b32 %s, 2, %s" % (v(vT + 5), v(vT + 4)))
    a("global_load_dword %s, %s, %s" % (v(vDD), v(vT + 5), s(PSD, 2)))
    HD = 28
    a("s_lshl_b32 %s, %s, 18" % (s(sT0), s(sG))); a("s_lshl_b32 %s, %s, 13" % (s(sT1), s(sJ)))
    a("s_add_u32 %s, %s, %s" % (s(sT0), s(sT0), s(sT1)))
    a("v_lshl_add_u32 %s, v0, 4, %s" % (v(vT + 6), s(sT0)))
    a("v_subrev_u32 %s, 4, %s" % (v(vT + 7), v(vT + 6)))
    a("s_mov_b32 %s, 4096" % s(sT1))
    a("buffer_load_dwordx4 %s, %s, %s, 0 offen" % (v(HD, 4), v(vT + 6), s(SH, 4)))
    a("buffer_load_dword %s, %s, %s, 0 offen" % (v(HD + 4), v(vT + 7), s(SH, 4)))
    a("buffer_load_dwordx4 %s, %s, %s, %s offen" % (v(HD + 8, 4), v(vT + 6), s(SH, 4), s(sT1)))
    a("buffer_load_dword %s, %s, %s, 0 offen offset:4092" % (v(HD + 12), v(vT + 6), s(SH, 4)))
    for (vo, dst) in ((vD0, QT), (vD1, QT + 4096)):
        a("s_add_u32 m0, %s, %d" % (s(sT2), dst)); a("s_nop 0")
        a("buffer_load_dwordx4 %s, %s, 0 offen lds" % (v(vo), s(SQ, 4)))
    a("s_lshl_b32 %s, %s, 2" % (s(sT0), s(sG))); a("s_add_u32 %s, %s, %d" % (s(sT0), s(sT0), EPA))
    a("s_load_dword %s, %s, %s" % (s(sEP), s(SWS, 2), s(sT0)))
    a("v_mov_b32 %s, 0" % v(vT + 8))
    a("v_lshrrev_b32 %s, 7, v0" % v(vT + 9)); a("v_and_b32 %s, 127, v0" % v(vT + 10))
    a("v_mul_u32_u24 %s, %d, %s" % (v(vT + 9), US, v(vT + 9)))
    a("v_lshl_add_u32 %s, %s, 2, %s" % (v(vT + 9), v(vT + 10), v(vT + 9)))
    a("ds_write_b32 %s, %s offset:%d" % (v(vT + 9), v(vT + 8), UL))
    a("v_lshrrev_b32 %s, 3, %s" % (v(vT + 9), v(vL)))
    a("v_mul_u32_u24 %s, %d, %s" % (v(vT + 9), HS, v(vT + 9)))
    a("v_lshl_add_u32 %s, %s, 2, %s" % (v(vT + 9), v(vT + 2), v(vT + 9)))
    a("ds_write_b32 %s, %s offset:%d" % (v(vT + 9), v(vT + 8), HB))
    vA0, vA1, vUS, vUL = 44, 45, 46, 47
    a("v_lshrrev_b32 %s, 2, %s" % (v(vT + 8), v(vT + 1)))
    a("v_and_b32 %s, 3, %s" % (v(vT + 9), v(vT + 1)))
    a("v_lshlrev_b32 %s, 2, %s" % (v(vT + 9), v(vT + 9)))
    a("v_lshl_add_u32 %s, %s, 10, %s" % (v(vT + 9), v(vT + 2), v(vT + 9)))
    a("v_xor_b32 %s, %s, %s" % (v(vT + 10), v(vT + 8), v(vT + 2)))
    a("v_lshl_add_u32 %s, %s, 4, %s" % (v(vA0), v(vT + 10), v(vT + 9)))
    a("v_add_u32 %s, 1, %s" % (v(vT + 10), v(vT + 2))); a("v_and_b32 %s, 7, %s" % (v(vT + 10), v(vT + 10)))
    a("v_xor_b32 %s, %s, %s" % (v(vT + 10), v(vT + 8), v(vT + 10)))
    a("v_lshl_add_u32 %s, %s, 4, %s" % (v(vA1), v(vT + 10), v(vT + 9)))
    a("s_lshl_b32 %s, %s, 7" % (s(sT0), s(sG)))
    a("v_lshl_add_u32 %s, %s, 4, %s" % (v(vT + 10), v(vT + 2), s(sT0)))
    a("s_lshl_b32 %s, %s, 17" % (s(sT1), s(sJ)))
    a("v_lshl_add_u32 %s, %s, 12, %s" % (v(vUS), v(vT + 1), v(vT + 10)))
    a("v_add_u32 %s, %s, %s" % (v(vUS), s(sT1), v(vUS)))
    a("s_lshl_b32 %s, %s, 12" % (s(sT1), s(sJ)))
    a("v_lshl_add_u32 %s, %s, 17, %s" % (v(vUL), v(vT + 1), v(vT + 10)))
    a("v_add_u32 %s, %s, %s" % (v(vUL), s(sT1), v(vUL)))
    a("s_waitcnt vmcnt(6) lgkmcnt(0)")
    a("s_barrier")
    stamp(1)
    KR, VR = 48, 60
    for jj in range(3): a("ds_read_b32 %s, %s offset:%d" % (v(KR + jj), v(vA0), KT + (5 + jj) * 128))
    for jj in range(8): a("ds_read_b32 %s, %s offset:%d" % (v(KR + 3 + jj), v(vA1), KT + 1024 + jj * 128))
    for jj in range(8): a("ds_read_b32 %s, %s offset:%d" % (v(VR + jj), v(vA0), VT + jj * 128))
    SP, DP, KP, VP, UD, UPK = 68, 76, 78, 100, 116, 132
    for jj in range(4):
        for c in range(2):
            src = v(TP + 2 * c + (jj >> 1))
            a(("v_lshlrev_b32 %s, 16, %s" if jj % 2 == 0 else "v_and_b32 %s, 0xffff0000, %s") % (v(SP + 2 * jj + c), src))
    a("v_lshlrev_b32 %s, 16, %s" % (v(DP), v(vDD))); a("v_and_b32 %s, 0xffff0000, %s" % (v(DP + 1), v(vDD)))
    a("s_waitcnt lgkmcnt(8)")
    for jj in range(11):
        a("v_lshlrev_b32 %s, 16, %s" % (v(KP + 2 * jj), v(KR + jj))); a("v_and_b32 %s, 0xffff0000, %s" % (v(KP + 2 * jj + 1), v(KR + jj)))
    for t in range(8): a("v_pk_mul_f32 %s, %s, %s" % (v(UD + 2 * t, 2), v(KP + 2 * (t + 3), 2), v(SP, 2)))
    for jj in range(1, 4):
        for t in range(8): a("v_pk_fma_f32 %s, %s, %s, %s" % (v(UD + 2 * t, 2), v(KP + 2 * (t + 3 - jj), 2), v(SP + 2 * jj, 2), v(UD + 2 * t, 2)))
    a("s_waitcnt lgkmcnt(0)")
    for jj in range(8):
        a("v_lshlrev_b32 %s, 16, %s" % (v(VP + 2 * jj), v(VR + jj))); a("v_and_b32 %s, 0xffff0000, %s" % (v(VP + 2 * jj + 1), v(VR + jj)))
    for t in range(8): a("v_pk_mul_f32 %s, %s, %s" % (v(UD + 2 * t, 2), v(UD + 2 * t, 2), v(VP + 2 * t, 2)))
    for c in range(2):
        for e in range(4): a("v_cvt_pk_bf16_f32 %s, %s, %s" % (v(UPK + 4 * c + e), v(UD + 2 * (7 - 2 * e) + c), v(UD + 2 * (6 - 2 * e) + c)))
        a("buffer_store_dwordx4 %s, %s, %s, 0 offen offset:%d sc1" % (v(UPK + 4 * c, 4), v(vUS), s(SO, 4), 2048 * c))
    for t in range(8): a("v_pk_mul_f32 %s, %s, %s" % (v(UD + 2 * t, 2), v(UD + 2 * t, 2), v(DP, 2)))
    stamp(2)
    a("s_waitcnt vmcnt(4)")
    a("v_cmp_ne_u32 vcc, 0, v0")
    a("v_lshlrev_b32 %s, 4, v0" % v(vT)); a("s_nop 0")
    AL = 48
    for c in range(2):
        d = HD + 8 * c
        a("v_cndmask_b32 %s, 0, %s, vcc" % (v(d + 4), v(d + 4)))
        a("v_alignbit_b32 %s, %s, %s, 16" % (v(AL + 4 * c), v(d), v(d + 4)))
        for e in range(1, 4): a("v_alignbit_b32 %s, %s, %s, 16" % (v(AL + 4 * c + e), v(d + e), v(d + e - 1)))
        for cc, src in ((3, d), (2, AL + 4 * c)):
            o = HB + (4 * c + cc) * HS + 24
            a("ds_write_b64 %s, %s offset:%d" % (v(vT), v(src, 2), o))
            a("ds_write_b64 %s, %s offset:%d" % (v(vT), v(src + 2, 2), o + 8))
        for cc, src in ((1, d), (0, AL + 4 * c)):
            a("v_add_u32 %s, %d, %s" % (v(vT + 1 + cc), HB + (4 * c + cc) * HS + 28, v(vT)))
            a("ds_write2_b32 %s, %s, %s offset0:0 offset1:1" % (v(vT + 1 + cc), v(src), v(src + 1)))
            a("ds_write2_b32 %s, %s, %s offset0:2 offset1:3" % (v(vT + 1 + cc), v(src + 2), v(src + 3)))
    a("s_add_u32 %s, %s, 0x%x" % (s(sTAG), s(sEP), TAGINC)); a("s_and_b32 %s, %s, 0xffffff00" % (s(sTAG), s(sTAG)))
    def handoff_A(n, F):
        a("s_waitcnt vmcnt(0)")
        a("s_barrier")
        a("s_lshl_b32 %s, %s, 7" % (s(sT0), s(sG))); a("s_add_u32 %s, %s, %d" % (s(sT0), s(sT0), F))
        a("s_cmp_lg_u32 %s, 0" % s(sWV)); a("s_cbranch_scc1 L_a_nopub%d" % n)
        a("s_lshl_b32 %s, %s, 2" % (s(sT1), s(sJ)))
        a("v_mov_b32 %s, %s" % (v(vT), s(sT1))); a("v_mov_b32 %s, %s" % (v(vT + 1), s(sTAG)))
        a("s_mov_b64 exec, 1")
        a("buffer_store_dword %s, %s, %s, %s offen sc1" % (v(vT + 1), v(vT), s(SWS, 4), s(sT0)))
        a("s_mov_b64 exec, -1")
        a.label("L_a_nopub%d" % n)
    def wait_A(n, epoch):
        a("s_cmp_lg_u32 %s, 1" % s(sWV)); a("s_cbranch_scc1 L_a_nopoll%d" % n)
        a("s_mov_b64 %s, -1" % s(sMASK, 2))
        a("v_and_b32 %s, 31, %s" % (v(vT), v(vL)))
        a("v_lshl_add_u32 %s, %s, 2, %s" % (v(vT), v(vT), s(sT0)))
        poll("L_a_poll%d" % n, vT, vT + 1, SWS, sTAG, sMASK, sCNT)
        if epoch:
            a("s_cmp_lg_u32 %s, 0" % s(sJ)); a("s_cbranch_scc1 L_a_nopoll%d" % n)
            a("s_lshl_b32 %s, %s, 2" % (s(sT2), s(sG))); a("s_add_u32 %s, %s, %d" % (s(sT2), s(sT2), EPA))
            a("v_mov_b32 %s, %s" % (v(vT), s(sT2))); a("v_mov_b32 %s, %s" % (v(vT + 1), s(sTAG)))
            a("s_mov_b64 exec, 1")
            a("buffer_store_dword %s, %s, %s, 0 offen sc1" % (v(vT + 1), v(vT), s(SWS, 4)))
            a("s_mov_b64 exec, -1")
        a.label("L_a_nopoll%d" % n)
        a("s_waitcnt lgkmcnt(0)")
        a("s_barrier")
    handoff_A(1, F1)
    stamp(3)
    QP = 100
    for jj in range(8): a("ds_read_b32 %s, %s offset:%d" % (v(VR + jj), v(vA0), QT + jj * 128))
    a("s_waitcnt lgkmcnt(0)")
    for jj in range(8):
        a("v_lshlrev_b32 %s, 16, %s" % (v(QP + 2 * jj), v(VR + jj))); a("v_and_b32 %s, 0xffff0000, %s" % (v(QP + 2 * jj + 1), v(VR + jj)))
    vCA, vCB, vRW = 16, 17, 18
    a("s_lshr_b32 %s, %s, 1" % (s(sT1), s(sWV))); a("s_and_b32 %s, %s, 1" % (s(sT2), s(sWV)))
    a("v_and_b32 %s, 3, %s" % (v(vT + 2), v(vL)))
    a("v_mul_u32_u24 %s, %d, %s" % (v(vCA), HS, v(vT + 2)))
    a("v_lshrrev_b32 %s, 4, %s" % (v(vT + 3), v(vL)))
    a("v_lshl_add_u32 %s, %s, 4, %s" % (v(vCA), v(vT + 3), v(vCA)))
    a("v_and_b32 %s, 12, %s" % (v(vT + 2), v(vL)))
    a("v_lshl_add_u32 %s, %s, 1, %s" % (v(vCA), v(vT + 2), v(vCA)))
    a("s_mul_i32 %s, %s, %d" % (s(sT3), s(sT1), 4 * HS)); a("s_lshl_b32 %s, %s, 8" % (s(sT2), s(sT2)))
    a("s_add_u32 %s, %s, %s" % (s(sT3), s(sT3), s(sT2))); a("s_add_u32 %s, %s, %d" % (s(sT3), s(sT3), HB))
    a("v_add_u32 %s, %s, %s" % (v(vCA), s(sT3), v(vCA)))
    a("v_and_b32 %s, 15, %s" % (v(vT + 4), v(vL)))
    a("v_lshlrev_b32 %s, 1, %s" % (v(vCB), v(vT + 4)))
    a("v_sub_u32 %s, %s, %s" % (v(vCB), v(vCB), v(vT + 3)))
    a("v_lshlrev_b32 %s, 4, %s" % (v(vCB), v(vCB)))
    a("s_mul_i32 %s, %s, %d" % (s(sT3), s(sT1), US)); a("s_sub_u32 %s, %s, %s" % (s(sT3), s(sT3), s(sT2)))
    a("s_add_u32 %s, %s, %d" % (s(sT3), s(sT3), UL + 512 + 16 - 192))
    a("v_add_u32 %s, %s, %s" % (v(vCB), s(sT3), v(vCB)))
    a("v_bfe_u32 %s, %s, 1, 2" % (v(vT + 2), v(vL)))
    a("v_xor_b32 %s, %s, %s" % (v(vT + 2), v(vT + 2), v(vT + 3)))
    a("v_lshlrev_b32 %s, 4, %s" % (v(vT + 2), v(vT + 2)))
    a("v_lshl_add_u32 %s, %s, 6, %s" % (v(vRW), v(vT + 4), v(vT + 2)))
    a("s_lshl_b32 %s, %s, 13" % (s(sT3), s(sWV))); a("s_add_u32 %s, %s, %d" % (s(sT3), s(sT3), HB))
    a("v_add_u32 %s, %s, %s" % (v(vRW), s(sT3), v(vRW)))
    wait_A(1, True)
    stamp(4)
    UT = 48
    for c in range(2): a("buffer_load_dwordx4 %s, %s, %s, 0 offen offset:%d sc1" % (v(UT + 4 * c, 4), v(vUL), s(SO, 4), 2048 * c))
    FA = [136, 196]
    ACC = 56
    FS = [132, 192]
    FS = [128 + 4, 0]
    def fa(st, p): return (136 if st == 0 else 200) + 4 * p
    def fb(st, q):
        if st == 0: return 168 + 4 * q
        return 232 + 4 * q if q < 6 else 88 + 4 * (q - 6)
    def rdA(rr, p):
        st = rr & 1
        return ["ds_read_b64 %s, %s offset:%d" % (v(fa(st, p), 2), v(vCA), 64 * rr + 512 * p),
                "ds_read_b64 %s, %s offset:%d" % (v(fa(st, p) + 2, 2), v(vCA), 64 * rr + 512 * p + 8)]
    def rdB(rr, q):
        return ["ds_read_b128 %s, %s offset:%d" % (v(fb(rr & 1, q), 4), v(vCB), 512 * q + 64 * (3 - rr))]
    for p in range(8):
        for x in rdA(0, p): a(x)
    a("v_lshlrev_b32 %s, 4, v0" % v(vT))
    for c in range(2):
        a("s_waitcnt vmcnt(%d)" % (1 - c))
        a("ds_write_b128 %s, %s offset:%d" % (v(vT), v(UT + 4 * c, 4), UL + US * c + 512))
    a("s_waitcnt lgkmcnt(0)")
    a("s_barrier")
    stamp(5)
    for q in range(8):
        for x in rdB(0, q): a(x)
    MF16 = "v_mfma_f32_16x16x32_bf16"
    for rr in range(4):
        a.c("---- conv residue %d" % rr)
        a("s_waitcnt lgkmcnt(0)")
        pre = []
        if rr < 3:
            for p in range(8): pre += rdA(rr + 1, p) + rdB(rr + 1, p)
        n = 0
        for p in range(8):
            for i in range(p, 8):
                a("%s %s, %s, %s, %s" % (MF16, v(ACC + 4 * i, 4), v(fa(rr & 1, p), 4), v(fb(rr & 1, i - p), 4), "0" if (rr == 0 and p == 0) else v(ACC + 4 * i, 4)))
                if n < len(pre): a(pre[n])
                n += 1
    stamp(6)
    a("s_barrier")
    a("s_nop 6")
    for i in range(8): a("ds_write_b128 %s, %s offset:%d" % (v(vRW), v(ACC + 4 * i, 4), 1024 * i))
    a("v_bfe_u32 %s, v0, 2, 2" % v(vT))
    a("v_lshlrev_b32 %s, 1, v0" % v(vT + 1))
    a("v_xor_b32 %s, %s, %s" % (v(vT), v(vT), v(vT + 1)))
    a("v_lshlrev_b32 %s, 4, %s" % (v(vT), v(vT)))
    a("v_xor_b32 %s, 16, %s" % (v(vT + 1), v(vT)))
    a("s_waitcnt lgkmcnt(0)")
    a("s_barrier")
    R0 = 136
    for c in range(2):
        for rh in range(2):
            for hf in range(2):
                a("ds_read_b128 %s, %s offset:%d" % (v(R0 + 16 * c + 8 * rh + 4 * hf, 4), v(vT + hf), HB + 8192 * (2 * c + rh)))
    for c in range(2):
        a("s_waitcnt lgkmcnt(%d)" % (4 - 4 * c))
        for i in range(8): a("v_add_f32 %s, %s, %s" % (v(R0 + 16 * c + i), v(R0 + 16 * c + i), v(R0 + 16 * c + 8 + i)))
        for i in range(4): a("v_cvt_pk_bf16_f32 %s, %s, %s" % (v(UT + 4 * c + i), v(R0 + 16 * c + 2 * i), v(R0 + 16 * c + 2 * i + 1)))
        a("buffer_store_dwordx4 %s, %s, %s, 0 offen offset:%d sc1" % (v(UT + 4 * c, 4), v(vUL), s(SO, 4), 2048 * c))
    stamp(7)
    handoff_A(3, F3)
    stamp(8)
    a("v_lshlrev_b32 %s, 4, v0" % v(vT + 2))
    a("v_lshrrev_b32 %s, 3, v0" % v(vT + 3)); a("v_and_b32 %s, 7, v0" % v(vT + 4))
    a("v_xor_b32 %s, %s, %s" % (v(vT + 4), s(sWV), v(vT + 4)))
    a("v_lshlrev_b32 %s, 4, %s" % (v(vT + 4), v(vT + 4)))
    a("v_lshl_add_u32 %s, %s, 11, %s" % (v(vT + 3), v(vT + 3), v(vT + 4)))
    a("s_lshl_b32 %s, %s, 17" % (s(sT1), s(sJ))); a("s_lshl_b32 %s, %s, 7" % (s(sT2), s(sG)))
    a("s_add_u32 %s, %s, %s" % (s(sT1), s(sT1), s(sT2)))
    a("v_add_u32 %s, %s, %s" % (v(vT + 3), s(sT1), v(vT + 3)))
    a("v_xor_b32 %s, 64, %s" % (v(vT + 4), v(vT + 3))); a("v_add_u32 %s, 65536, %s" % (v(vT + 4), v(vT + 4)))
    wait_A(3, False)
    stamp(9)
    YT, YP = 136, 144
    for c in range(2): a("buffer_load_dwordx4 %s, %s, %s, 0 offen offset:%d sc1" % (v(YT + 4 * c, 4), v(vUS), s(SO, 4), 2048 * c))
    for c in range(2):
        a("s_waitcnt vmcnt(%d)" % (1 - c))
        for e in range(4):
            a("v_lshlrev_b32 %s, 16, %s" % (v(YP + 4 * e + c), v(YT + 4 * c + e)))
            a("v_and_b32 %s, 0xffff0000, %s" % (v(YP + 4 * e + 2 + c), v(YT + 4 * c + e)))
    for t in range(8): a("v_pk_add_f32 %s, %s, %s" % (v(YP + 2 * t, 2), v(YP + 2 * t, 2), v(UD + 2 * t, 2)))
    for t in range(8): a("v_pk_mul_f32 %s, %s, %s" % (v(YP + 2 * t, 2), v(YP + 2 * t, 2), v(QP + 2 * t, 2)))
    for t in range(8):
        a("v_cvt_pk_bf16_f32 %s, %s, %s" % (v(YT + t), v(YP + 2 * t), v(YP + 2 * t + 1)))
        a("ds_write_b32 %s, %s offset:%d" % (v(vA0), v(YT + t), OT + 128 * t))
    a("s_waitcnt lgkmcnt(0)")
    a("s_barrier")
    stamp(10)
    for e in range(2): a("ds_read_b128 %s, %s offset:%d" % (v(YP + 4 * e, 4), v(vT + 2), OT + 4096 * e))
    for e in range(2):
        a("s_waitcnt lgkmcnt(%d)" % (1 - e))
        a("buffer_store_dwordx4 %s, %s, %s, 0 offen" % (v(YP + 4 * e, 4), v(vT + 3 + e), s(SO, 4)))
    if cfg.stamps: a("s_waitcnt vmcnt(0)")
    stamp(11)
    stamp_flush(12, SWS, 2, sWV)
    a.label("L_end")
    a("s_endpgm")
    return a

HDR = open(os.path.join(os.path.dirname(os.path.abspath(__file__)), "..", "cdna_kernels", NAME + ".s.ref")).read() if os.path.exists(os.path.join(os.path.dirname(os.path.abspath(__file__)), "..", "cdna_kernels", NAME + ".s.ref")) else None

def full(cfg):
    a = gen(cfg)
    errs = check(a.lines)
    for e in errs: print(e, file=sys.stderr)
    head = HDR[:HDR.index("; Override launch")]
    out = head + "; @launch grid=(512,1,1) block=(256,1,1) lds=81920\n"
    out += '.amdgcn_target "amdgcn-amd-amdhsa--gfx950"\n.text\n.globl %s_kernel\n.p2align 8\n.type %s_kernel,@function\n%s_kernel:\n' % (NAME, NAME, NAME)
    out += a.text()
    out += HDR[HDR.index('.section .rodata'):]
    return out, errs

if __name__ == "__main__":
    cfg = Cfg()
    outp = sys.argv[1]
    for x in sys.argv[2:]:
        k, val = x.split("=")
        setattr(cfg, k, eval(val))
    txt, errs = full(cfg)
    open(outp, "w").write(txt)
    print("wrote", outp, len(txt), "bytes;", len(errs), "hazards")
```

```python
import sys, re
NAME = "concat_heads__ssm_conv_h3__sliding_block__prompt"
def desc(n, vg=64):
    return """.p2align 6
.amdhsa_kernel %s
  .amdhsa_next_free_vgpr %d
  .amdhsa_next_free_sgpr 102
  .amdhsa_accum_offset %d
  .amdhsa_group_segment_fixed_size 0
  .amdhsa_kernarg_size 96
  .amdhsa_user_sgpr_count 2
  .amdhsa_user_sgpr_kernarg_segment_ptr 1
  .amdhsa_system_sgpr_workgroup_id_x 1
.end_amdhsa_kernel
""" % (n, vg, vg)
def kern(n, body): return ".globl %s\n.p2align 8\n.type %s,@function\n%s:\n%s\n" % (n, n, n, body)
EMPTY = "    s_endpgm"
def export(idx, lo, hi, mult=20):
    b = """    s_cmp_lg_u32 s2, 0
    s_cbranch_scc1 L_x_end
    s_load_dwordx2 s[4:5], s[0:1], 88
    s_mov_b32 s6, 8388608
    s_mov_b32 s7, 0x20000
    s_mov_b32 s8, 7340032
    v_lshlrev_b32 v1, 7, v0
    v_mov_b32 v2, -1
    v_mov_b32 v3, 0
    s_waitcnt lgkmcnt(0)
"""
    for i in range(8):
        b += "    buffer_load_dword v4, v1, s[4:7], s8 offen\n    buffer_load_dword v5, v1, s[4:7], s8 offen offset:%d\n    s_waitcnt vmcnt(0)\n    v_min_u32 v2, v2, v4\n" % (8 * idx)
        if lo <= 64 * i < hi: b += "    v_max_u32 v3, v3, v5\n"
        b += "    s_add_u32 s8, s8, 8192\n"
    b += "    s_mov_b32 s10, -1\n    s_mov_b32 s11, 0\n    s_nop 1\n"
    for l in range(64):
        b += "    v_readlane_b32 s12, v2, %d\n    v_readlane_b32 s13, v3, %d\n    s_nop 1\n    s_min_u32 s10, s10, s12\n    s_max_u32 s11, s11, s13\n" % (l, l)
    b += """    s_sub_u32 s10, s11, s10
    s_min_u32 s10, s10, 20000
    s_mul_i32 s10, s10, %d
    s_memrealtime s[14:15]
    s_waitcnt lgkmcnt(0)
L_x_spin:
    s_memrealtime s[16:17]
    s_waitcnt lgkmcnt(0)
    s_sub_u32 s18, s16, s14
    s_cmp_lt_u32 s18, s10
    s_cbranch_scc1 L_x_spin
L_x_end:
    s_endpgm""" % mult
    return b
def make(src, dst, seq, extra):
    t = open(src).read()
    m = re.search(r"; @launch (grid.*)\n", t)
    lines = ""
    for k in seq:
        if k == "main": lines += "; @launch kernel=%s_kernel %s\n" % (NAME, m.group(1))
        elif k == "empty": lines += "; @launch kernel=empty_kernel grid=(256,1,1) block=(64,1,1) lds=0\n"
        else: lines += "; @launch kernel=x_kernel grid=(1,1,1) block=(64,1,1) lds=0\n"
    t = t.replace(m.group(0), lines)
    add = ""; d = ""
    if "empty" in seq: add += kern("empty_kernel", EMPTY); d += desc("empty_kernel")
    if "x" in seq: add += kern("x_kernel", extra); d += desc("x_kernel")
    i = t.index(".section .rodata")
    open(dst, "w").write(t[:i] + add + t[i:] + d)
if __name__ == "__main__":
    src, dst, seq = sys.argv[1], sys.argv[2], sys.argv[3].split(",")
    ex = None
    if "x" in seq:
        idx, lo, hi, mult = map(int, sys.argv[4:8]); ex = export(idx, lo, hi, mult)
    make(src, dst, seq, ex)
```

```python
import sys, re
NAME = "concat_heads__ssm_conv_h3__sliding_block__prompt"
def desc(n, vg=64):
    return """.p2align 6
.amdhsa_kernel %s
  .amdhsa_next_free_vgpr %d
  .amdhsa_next_free_sgpr 102
  .amdhsa_accum_offset %d
  .amdhsa_group_segment_fixed_size 0
  .amdhsa_kernarg_size 96
  .amdhsa_user_sgpr_count 2
  .amdhsa_user_sgpr_kernarg_segment_ptr 1
  .amdhsa_system_sgpr_workgroup_id_x 1
.end_amdhsa_kernel
""" % (n, vg, vg)
def kern(n, body): return ".globl %s\n.p2align 8\n.type %s,@function\n%s:\n%s\n" % (n, n, n, body)
EMPTY = "    s_endpgm"
def export(idx, lo, hi, mult=20, avg=0):
    b = """    s_cmp_lg_u32 s2, 0
    s_cbranch_scc1 L_x_end
    s_load_dwordx2 s[4:5], s[0:1], 88
    s_mov_b32 s6, 8388608
    s_mov_b32 s7, 0x20000
    s_mov_b32 s8, 7864320
    v_lshlrev_b32 v1, 7, v0
    v_mov_b32 v2, -1
    v_mov_b32 v3, 0
    s_waitcnt lgkmcnt(0)
"""
    for i in range(8):
        b += "    buffer_load_dword v4, v1, s[4:7], s8 offen\n    buffer_load_dword v5, v1, s[4:7], s8 offen offset:%d\n    s_waitcnt vmcnt(0)\n    v_min_u32 v2, v2, v4\n" % (8 * idx)
        if lo <= 64 * i < hi: b += ("    v_add_u32 v3, v3, v5\n" if avg else "    v_max_u32 v3, v3, v5\n")
        b += "    s_add_u32 s8, s8, 8192\n"
    b += "    s_mov_b32 s10, -1\n    s_mov_b32 s11, 0\n    s_nop 1\n"
    for l in range(64):
        b += "    v_readlane_b32 s12, v2, %d\n    v_readlane_b32 s13, v3, %d\n    s_nop 1\n    s_min_u32 s10, s10, s12\n    %s s11, s11, s13\n" % (l, l, "s_add_u32" if avg else "s_max_u32")
    if avg: b += "    s_mul_i32 s10, s10, %d\n    s_sub_u32 s10, s11, s10\n    s_lshr_b32 s10, s10, 8\n" % (hi - lo)
    else: b += "    s_sub_u32 s10, s11, s10\n"
    b += """
    s_min_u32 s10, s10, 20000
    s_mul_i32 s10, s10, %d
    s_memrealtime s[14:15]
    s_waitcnt lgkmcnt(0)
L_x_spin:
    s_memrealtime s[16:17]
    s_waitcnt lgkmcnt(0)
    s_sub_u32 s18, s16, s14
    s_cmp_lt_u32 s18, s10
    s_cbranch_scc1 L_x_spin
L_x_end:
    s_endpgm""" % mult
    return b
def make(src, dst, seq, extra):
    t = open(src).read()
    m = re.search(r"; @launch (grid.*)\n", t)
    lines = ""
    for k in seq:
        if k == "main": lines += "; @launch kernel=%s_kernel %s\n" % (NAME, m.group(1))
        elif k == "empty": lines += "; @launch kernel=empty_kernel grid=(256,1,1) block=(64,1,1) lds=0\n"
        else: lines += "; @launch kernel=x_kernel grid=(1,1,1) block=(64,1,1) lds=0\n"
    t = t.replace(m.group(0), lines)
    add = ""; d = ""
    if "empty" in seq: add += kern("empty_kernel", EMPTY); d += desc("empty_kernel")
    if "x" in seq: add += kern("x_kernel", extra); d += desc("x_kernel")
    i = t.index(".section .rodata")
    open(dst, "w").write(t[:i] + add + t[i:] + d)
if __name__ == "__main__":
    src, dst, seq = sys.argv[1], sys.argv[2], sys.argv[3].split(",")
    ex = None
    if "x" in seq:
        idx, lo, hi, mult, avg = map(int, sys.argv[4:9]); ex = export(idx, lo, hi, mult, avg)
    make(src, dst, seq, ex)
```

```python
import sys, os
sys.path.insert(0, os.path.dirname(os.path.abspath(__file__)))
from asmlib import Asm, v, s, check

NAME = "concat_heads__ssm_conv_h3__sliding_block__prompt"
MB = 1 << 20
KV_OFF = 0x10000
O_OFF = 5 * MB
FL = 7 * MB
EPA, EPB = FL, FL + 128
F1, F3, F4, F2 = FL + 0x1000, FL + 0x2000, FL + 0x3000, FL + 0x8000
GOFF = 0x3000
ST_OFF = 7 * MB + MB // 2
WS_SIZE = 8 * MB
TAGINC = 0x9E377900
SPIN = 200000

class Cfg:
    stamps = False
    only = None
    rot = 1
    local = True
    fast = True
    tmo = 64
    slp = 1
    prio = 2
    pref = True
    outsc = ""
    qearly = 1
    aprio = 3
    dbg = False
    b3pre = 4
    exp = ""
    xtouch = 0
    otouch = 1

def gen(cfg):
    a = Asm()
    nst = [0]
    ST0 = 64
    def stamp(i):
        if cfg.stamps: a("%s %s" % ("s_memtime" if cfg.stamps == 2 else "s_memrealtime", s(ST0 + 2 * i, 2)))
    def stamp_flush(n, wsrd, wgreg, wvreg):
        if not cfg.stamps: return
        lab = "L_nost%d" % nst[0]; nst[0] += 1
        a("s_cmp_lg_u32 %s, 0" % s(wvreg)); a("s_cbranch_scc1 %s" % lab)
        a("s_waitcnt lgkmcnt(0)")
        a("s_lshl_b32 s60, %s, 7" % s(wgreg)); a("s_add_u32 s60, s60, %d" % ST_OFF)
        a("v_mov_b32 v0, 0")
        for i in range(n):
            a("v_mov_b32 v2, %s" % s(ST0 + 2 * i)); a("v_mov_b32 v3, %s" % s(ST0 + 2 * i + 1))
            a("buffer_store_dwordx2 v[2:3], v0, %s, s60 offen offset:%d" % (s(wsrd, 4), 8 * i))
        a.label(lab)
    def srd(base, size):
        a("s_mov_b32 %s, %d" % (s(base + 2), size)); a("s_mov_b32 %s, 0x20000" % s(base + 3))
    def mark(vtmp, i):
        if not cfg.dbg: return
        a("s_load_dwordx2 s[96:97], s[0:1], 80"); a("s_waitcnt lgkmcnt(0)")
        a("v_mov_b32 %s, %d" % (v(vtmp), 4 * i)); a("v_mov_b32 v255, 1")
        a("s_mov_b64 exec, 1"); a("global_atomic_add %s, v255, s[96:97] sc1" % v(vtmp)); a("s_mov_b64 exec, -1")
    def poll(lab, vaddr, vtmp, wsrd, stag, smask, scnt):
        a("s_mov_b32 %s, %d" % (s(scnt), SPIN))
        a.label(lab)
        a("buffer_load_dword %s, %s, %s, 0 offen sc1" % (v(vtmp), v(vaddr), s(wsrd, 4)))
        a("s_waitcnt vmcnt(0)")
        a("v_cmp_ne_u32 vcc, %s, %s" % (s(stag), v(vtmp)))
        a("s_sub_u32 %s, %s, 1" % (s(scnt), s(scnt)))
        a("s_and_b64 vcc, vcc, %s" % s(smask, 2))
        a("s_cbranch_scc0 %s_x" % lab)
        if cfg.slp: a("s_sleep %d" % cfg.slp)
        a("s_cmp_lg_u32 %s, 0" % s(scnt))
        a("s_cbranch_scc1 %s" % lab)
        mark(vtmp, 0)
        a.label(lab + "_x")
    tails = []
    def poll_group(lab, vaddr, vtmp, wsrd, stagx, stag, scnt, stmo, sme, sp):
        if not cfg.local:
            a("s_mov_b64 %s, -1" % s(sp, 2))
            poll(lab, vaddr, vtmp, wsrd, stag, sp, scnt); return
        a("s_mov_b32 %s, %s" % (s(scnt), s(stmo)))
        a.label(lab)
        a("buffer_load_dword %s, %s, %s, 0 offen sc1" % (v(vtmp), v(vaddr), s(wsrd, 4)))
        a("s_waitcnt vmcnt(0)")
        a("v_cmp_ne_u32 vcc, %s, %s" % (s(stagx), v(vtmp)))
        a("s_sub_u32 %s, %s, 1" % (s(scnt), s(scnt)))
        a("s_cmp_eq_u64 vcc, 0")
        a("s_cbranch_scc1 %s_x" % lab)
        if cfg.slp: a("s_sleep %d" % cfg.slp)
        a("s_cmp_gt_i32 %s, 0" % s(scnt))
        a("s_cbranch_scc1 %s" % lab)
        a("s_branch %s_g" % lab)
        a.label(lab + "_x")
        def tail():
            a.label(lab + "_g")
            mark(vtmp, 2)
            a("buffer_wbl2 sc1")
            a("s_waitcnt vmcnt(0)")
            a("v_mov_b32 %s, %s" % (v(vtmp), s(sme))); a("v_mov_b32 %s, %s" % (v(vtmp + 1), s(stag)))
            a("s_mov_b32 %s, %d" % (s(scnt), GOFF))
            a("s_mov_b64 exec, 1")
            a("buffer_store_dword %s, %s, %s, %s offen sc1" % (v(vtmp + 1), v(vtmp), s(wsrd, 4), s(scnt)))
            a("s_mov_b64 exec, -1")
            a("s_mov_b32 %s, %d" % (s(stmo), SPIN))
            a.label(lab + "_gl")
            a("buffer_load_dword %s, %s, %s, 0 offen sc1" % (v(vtmp), v(vaddr), s(wsrd, 4)))
            a("buffer_load_dword %s, %s, %s, %s offen sc1" % (v(vtmp + 1), v(vaddr), s(wsrd, 4), s(scnt)))
            a("s_waitcnt vmcnt(0)")
            a("v_cmp_ne_u32 vcc, %s, %s" % (s(stagx), v(vtmp)))
            a("v_cmp_ne_u32 %s, %s, %s" % (s(sp, 2), s(stag), v(vtmp + 1)))
            a("s_sub_u32 %s, %s, 1" % (s(stmo), s(stmo)))
            a("s_and_b64 vcc, vcc, %s" % s(sp, 2))
            a("s_cbranch_scc0 %s_gx" % lab)
            a("s_sleep 2")
            a("s_cmp_lg_u32 %s, 0" % s(stmo))
            a("s_cbranch_scc1 %s_gl" % lab)
            mark(vtmp, 1)
            a.label(lab + "_gx")
            a("s_mov_b32 %s, 0" % s(stmo))
            a("buffer_inv sc1")
            a("s_waitcnt vmcnt(0)")
            a("s_branch %s_x" % lab)
        tails.append(tail)
    HS_ = "" if cfg.local else " sc1"

    a.label("L_start")
    a("s_cmp_ge_u32 s2, 512"); a("s_cbranch_scc1 L_end")
    a("s_cmp_ge_u32 s2, 256"); a("s_cbranch_scc1 L_A")
    if cfg.only == "A": a("s_branch L_end")
    SX, SW, SWO, SOUT, SWS = 4, 8, 12, 16, 20
    sG, sJ, sRB, sHQ, sWV, sROT, sT0, sT1, sT2, sT3 = 24, 25, 26, 27, 28, 29, 30, 31, 32, 33
    sM0X, sM0W, sCNT, sQ = 34, 35, 36, 37
    sMASK = 38
    sEP = 40
    sEXV = 48
    stamp(0)
    a("s_load_dwordx2 %s, s[0:1], 48" % s(SX, 2))
    a("s_load_dwordx2 %s, s[0:1], 56" % s(SW, 2))
    a("s_load_dwordx2 %s, s[0:1], 88" % s(SWS, 2))
    a("s_load_dwordx2 %s, s[0:1], 64" % s(SWO, 2))
    a("s_load_dwordx2 %s, s[0:1], 72" % s(SOUT, 2))
    if cfg.pref:
        a("s_cmp_ge_u32 s2, 8"); a("s_cbranch_scc1 L_b_nopf")
        a("s_getpc_b64 s[60:61]")
        a.label("L_pc")
        a("v_lshlrev_b32 v1, 7, v0")
        a("v_min_u32 v1, L_hot_end-L_pc-4, v1")
        a("global_load_dword v2, v1, s[60:61]")
        a.label("L_b_nopf")
    srd(SX, 2 * MB); srd(SW, 3 * MB // 2); srd(SWO, MB // 2); srd(SOUT, 4 * MB); srd(SWS, WS_SIZE)
    a("s_and_b32 %s, s2, 7" % s(sG)); a("s_lshr_b32 %s, s2, 3" % s(sJ))
    a("s_lshr_b32 %s, %s, 3" % (s(sT0), s(sJ)))
    a("s_lshl_b32 %s, %s, 2" % (s(sRB), s(sG))); a("s_add_u32 %s, %s, %s" % (s(sRB), s(sRB), s(sT0)))
    a("s_and_b32 %s, %s, 7" % (s(sHQ), s(sJ)))
    if cfg.rot == 1:
        a("s_lshl_b32 %s, %s, 1" % (s(sROT), s(sT0))); a("s_add_u32 %s, %s, %s" % (s(sROT), s(sROT), s(sHQ)))
    elif cfg.rot == 2: a("s_lshr_b32 %s, %s, 1" % (s(sROT), s(sT0)))
    elif cfg.rot == 3: a("s_mov_b32 %s, %s" % (s(sROT), s(sT0)))
    elif cfg.rot == 4: a("s_mov_b32 %s, %s" % (s(sROT), s(sG)))
    elif cfg.rot == 5:
        a("s_lshl_b32 %s, %s, 1" % (s(sROT), s(sT0))); a("s_add_u32 %s, %s, %s" % (s(sROT), s(sROT), s(sG)))
    elif cfg.rot == 6:
        a("s_add_u32 %s, %s, %s" % (s(sROT), s(sHQ), s(sG)))
    elif cfg.rot == 7:
        a("s_lshr_b32 %s, %s, 1" % (s(sROT), s(sT0))); a("s_lshl_b32 %s, %s, 2" % (s(sROT), s(sROT))); a("s_add_u32 %s, %s, %s" % (s(sROT), s(sROT), s(sG))); a("s_add_u32 %s, %s, %s" % (s(sROT), s(sROT), s(sHQ)))
    else: a("s_mov_b32 %s, 0" % s(sROT))
    if cfg.prio: a("s_setprio %d" % cfg.prio)
    XF = 0
    WF = 128
    AK, AV, AQ = 160, 176, 192
    vL, vX0, vX1, vW0, vW1, vWR, vWQ = 208, 209, 210, 211, 212, 213, 214
    vXR = 216
    vT = 220
    vL16 = 236
    a("v_lshrrev_b32 %s, 6, v0" % v(vT)); a("v_and_b32 %s, 63, v0" % v(vL))
    a("v_readfirstlane_b32 %s, %s" % (s(sWV), v(vT)))
    a("v_lshlrev_b32 %s, 4, %s" % (v(vL16), v(vL)))
    a("v_lshrrev_b32 %s, 3, %s" % (v(vT), v(vL)))
    a("v_and_b32 %s, 7, %s" % (v(vT + 1), v(vL)))
    a("v_lshrrev_b32 %s, 4, %s" % (v(vT + 2), v(vL)))
    a("s_lshl_b32 %s, %s, 4" % (s(sT1), s(sWV)))
    a("v_add_u32 %s, %s, %s" % (v(vT + 3), s(sT1), v(vT)))
    a("v_xor_b32 %s, %s, %s" % (v(vT + 4), v(vT + 1), v(vT + 2)))
    a("v_lshlrev_b32 %s, 4, %s" % (v(vT + 4), v(vT + 4)))
    a("s_lshl_b32 %s, %s, 16" % (s(sT2), s(sRB)))
    a("v_lshl_add_u32 %s, %s, 10, %s" % (v(vX0), v(vT + 3), v(vT + 4)))
    a("v_add_u32 %s, %s, %s" % (v(vX0), s(sT2), v(vX0)))
    a("v_xor_b32 %s, 64, %s" % (v(vX1), v(vX0)))
    a("v_add_u32 %s, 8192, %s" % (v(vX1), v(vX1)))
    a("v_and_b32 %s, 1, %s" % (v(vT + 5), v(vT + 2)))
    a("v_lshlrev_b32 %s, 2, %s" % (v(vT + 5), v(vT + 5)))
    a("v_xor_b32 %s, %s, %s" % (v(vT + 5), v(vT + 5), v(vT + 1)))
    a("v_lshlrev_b32 %s, 4, %s" % (v(vT + 5), v(vT + 5)))
    a("v_mul_u32_u24 %s, 3072, %s" % (v(vW0), v(vT + 3)))
    a("s_lshl_b32 %s, %s, 7" % (s(sT2), s(sHQ)))
    a("v_add3_u32 %s, %s, %s, %s" % (v(vW0), v(vW0), v(vT + 5), s(sT2)))
    a("v_add_u32 %s, 24576, %s" % (v(vW1), v(vW0)))
    vWO = 237
    a("v_lshl_add_u32 %s, %s, 10, %s" % (v(vWO), v(vT), v(vT + 5)))
    a("v_add_u32 %s, %s, %s" % (v(vWO), s(sT2), v(vWO)))
    a("s_lshl_b32 %s, %s, 11" % (s(sM0X), s(sWV)))
    a("s_lshl_b32 %s, %s, 12" % (s(sM0W), s(sWV)))
    SLOT = 24576
    sD0, sD1, sD2 = 53, 54, 55
    def dma_kv(st):
        base = (st % 3) * SLOT
        L = "buffer_load_dwordx4 %s, %s, %s offen%s lds"
        return [["s_add_u32 %s, %s, %d" % (s(sD0), s(sROT), st), "s_and_b32 %s, %s, 7" % (s(sD0), s(sD0)),
                 "s_add_u32 m0, %s, %d" % (s(sM0X), base), "s_lshl_b32 %s, %s, 7" % (s(sD1), s(sD0)),
                 L % (v(vX0), s(SX, 4), s(sD1), "")],
                ["s_add_u32 m0, %s, %d" % (s(sM0X), base + 1024), "s_mul_i32 %s, %s, 196608" % (s(sD2), s(sD0)),
                 L % (v(vX1), s(SX, 4), s(sD1), "")],
                ["s_add_u32 m0, %s, %d" % (s(sM0W), base + 8192), "s_add_u32 %s, %s, 1024" % (s(sD2), s(sD2)),
                 L % (v(vW0), s(SW, 4), s(sD2), "")],
                [L % (v(vW0), s(SW, 4), s(sD2), " offset:1024")],
                ["s_add_u32 m0, %s, %d" % (s(sM0W), base + 8192 + 2048), "s_nop 0", L % (v(vW1), s(SW, 4), s(sD2), "")],
                [L % (v(vW1), s(SW, 4), s(sD2), " offset:1024")]]
    QCH = {8: [0, 1, 2], 9: [3, 4, 5], 10: [6, 7]}
    def dma_q(st):
        base = (st % 3) * SLOT
        out = []
        for n, c in enumerate(QCH[st]):
            out.append(["s_add_u32 %s, %s, %d" % (s(sD0), s(sROT), c), "s_and_b32 %s, %s, 7" % (s(sD0), s(sD0)),
                        "s_add_u32 m0, %s, %d" % (s(sM0X), base + n * 8192), "s_mul_i32 %s, %s, 196608" % (s(sD2), s(sD0)),
                        "buffer_load_dwordx4 %s, %s, %s offen lds" % (v(vW0), s(SW, 4), s(sD2))])
            out.append(["s_add_u32 m0, %s, %d" % (s(sM0X), base + n * 8192 + 1024), "s_nop 0",
                        "buffer_load_dwordx4 %s, %s, %s offen lds" % (v(vW1), s(SW, 4), s(sD2))])
        return out
    def dma(st): return dma_kv(st) if st < 8 else (dma_q(st) if st <= 10 else [])
    def emit(groups):
        for gr in groups:
            for x in gr: a(x)
    a("s_lshl_b32 %s, %s, 7" % (s(sT0), s(sRB))); a("s_add_u32 %s, %s, %d" % (s(sT0), s(sT0), F4))
    a("v_mov_b32 v3, 0")
    a("s_waitcnt lgkmcnt(0)")
    if cfg.xtouch:
        a("s_cmp_lg_u32 %s, 3" % s(sWV)); a("s_cbranch_scc1 L_b_noxt")
        a("s_lshl_b32 %s, %s, 16" % (s(sT1), s(sRB))); a("s_lshl_b32 %s, %s, 7" % (s(sT2), s(sHQ))); a("s_add_u32 %s, %s, %s" % (s(sT1), s(sT1), s(sT2)))
        a("v_lshlrev_b32 v5, 10, %s" % v(vL))
        a("buffer_load_dword v6, v5, %s, %s offen" % (s(SX, 4), s(sT1)))
        a.label("L_b_noxt")
    emit(dma(0))
    if cfg.local: a("buffer_load_dword v4, v3, %s, %s offen sc1" % (s(SWS, 4), s(sT0)))
    emit(dma(1))
    a("s_lshl_b32 %s, %s, 2" % (s(sT0), s(sRB))); a("s_add_u32 %s, %s, %d" % (s(sT0), s(sT0), EPB))
    a("s_load_dword %s, %s, %s" % (s(sEP), s(SWS, 2), s(sT0)))
    a("s_lshl_b32 %s, %s, 2" % (s(sT1), s(sWV))); a("s_add_u32 %s, %s, %s" % (s(sT0), s(sT0), s(sT1))); a("s_add_u32 %s, %s, 4" % (s(sT0), s(sT0)))
    a("s_load_dword %s, %s, %s" % (s(sEP + 1), s(SWS, 2), s(sT0)))
    vFA, vFV = 247, 248
    a("s_add_u32 %s, %s, %s" % (s(sT2), s(sRB), s(sWV))); a("s_lshl_b32 %s, %s, 10" % (s(sT2), s(sT2)))
    a("s_add_u32 %s, %s, %s" % (s(sT2), s(sT2), s(sT1))); a("s_lshl_b32 %s, %s, 7" % (s(sT1), s(sHQ)))
    a("s_add_u32 %s, %s, %s" % (s(sT2), s(sT2), s(sT1))); a("s_add_u32 %s, %s, %d" % (s(sT2), s(sT2), F2 + 1024))
    a("v_mov_b32 %s, %s" % (v(vFA), s(sT2)))
    a("s_and_b32 %s, %s, 1" % (s(sT0), s(sWV)))
    a("s_lshr_b32 %s, %s, 1" % (s(sT1), s(sWV)))
    a("v_and_b32 %s, 31, %s" % (v(vT), v(vL)))
    a("v_lshrrev_b32 %s, 5, %s" % (v(vT + 1), v(vL)))
    a("v_bfe_u32 %s, %s, 1, 3" % (v(vT + 2), v(vL)))
    a("s_lshl_b32 %s, %s, 12" % (s(sT2), s(sT0)))
    a("v_lshl_add_u32 %s, %s, 7, %s" % (v(vT + 3), v(vT), s(sT2)))
    for ks in range(4):
        a("v_add_u32 %s, %d, %s" % (v(vT + 4), 2 * ks, v(vT + 1)))
        a("v_xor_b32 %s, %s, %s" % (v(vT + 4), v(vT + 4), v(vT + 2)))
        a("v_lshl_add_u32 %s, %s, 4, %s" % (v(vXR + ks), v(vT + 4), v(vT + 3)))
    a("v_bfe_u32 %s, %s, 2, 2" % (v(vT + 4), v(vL)))
    a("v_bfe_u32 %s, %s, 3, 1" % (v(vT + 5), v(vL)))
    a("v_xor_b32 %s, %s, %s" % (v(vT + 5), s(sT1), v(vT + 5)))
    a("v_lshlrev_b32 %s, 6, %s" % (v(vT + 5), v(vT + 5)))
    a("v_lshl_add_u32 %s, %s, 7, %s" % (v(vT + 5), v(vT + 4), v(vT + 5)))
    a("v_bfe_u32 %s, %s, 4, 1" % (v(vT + 6), v(vL)))
    a("v_lshl_add_u32 %s, %s, 5, %s" % (v(vT + 5), v(vT + 6), v(vT + 5)))
    a("v_and_b32 %s, 3, %s" % (v(vT + 7), v(vL)))
    a("v_lshl_add_u32 %s, %s, 3, %s" % (v(vT + 5), v(vT + 7), v(vT + 5)))
    a("v_lshl_add_u32 %s, %s, 11, %s" % (v(vWR), v(vT + 1), v(vT + 5)))
    a("v_lshl_add_u32 %s, %s, 10, %s" % (v(vWQ), v(vT + 1), v(vT + 5)))
    a("v_add_u32 %s, 8192, %s" % (v(vWR), v(vWR)))
    a("v_add_u32 %s, 49152, %s" % (v(vWQ + 1), v(vWQ)))
    vKS, vVS, vKL, vVL = 238, 239, 240, 241
    XK, XV, XQ = 73728, 40960, 49152
    a("s_lshl_b32 %s, %s, 1" % (s(sT2), s(sHQ))); a("s_add_u32 %s, %s, %s" % (s(sT2), s(sT2), s(sT1)))
    a("s_lshl_b32 %s, %s, 18" % (s(sT2), s(sT2)))
    a("s_lshl_b32 %s, %s, 1" % (s(sT3), s(sRB))); a("s_add_u32 %s, %s, %s" % (s(sT3), s(sT3), s(sT0)))
    a("s_lshl_b32 %s, %s, 11" % (s(sT3), s(sT3))); a("s_add_u32 %s, %s, %s" % (s(sT2), s(sT2), s(sT3)))
    a("s_add_u32 %s, %s, %d" % (s(sT2), s(sT2), KV_OFF))
    a("v_add_u32 %s, %s, %s" % (v(vKS), s(sT2), v(vL16)))
    a("v_and_b32 %s, 15, %s" % (v(vT + 8), v(vL)))
    a("v_lshlrev_b32 %s, 4, %s" % (v(vT + 8), v(vT + 8)))
    a("v_lshl_add_u32 %s, %s, 8, %s" % (v(vT + 8), v(vT + 1), v(vT + 8)))
    vVP = 242
    a("v_mov_b32 %s, %s" % (v(vVP), v(vT + 8)))
    a("v_lshl_add_u32 %s, %s, 17, %s" % (v(vVS), v(vT + 6), v(vT + 8)))
    a("v_add_u32 %s, %s, %s" % (v(vVS), s(sT2), v(vVS)))
    a("s_lshl_b32 %s, %s, 12" % (s(sT2), s(sT1))); a("s_lshl_b32 %s, %s, 10" % (s(sT3), s(sT0)))
    a("s_add_u32 %s, %s, %s" % (s(sT2), s(sT2), s(sT3)))
    a("v_add_u32 %s, %s, %s" % (v(vKL), s(sT2), v(vL16)))
    a("v_lshl_add_u32 %s, %s, 11, %s" % (v(vVL), v(vT + 6), v(vT + 8)))
    a("v_add_u32 %s, %s, %s" % (v(vVL), s(sT2), v(vVL)))
    a("v_add_u32 %s, %d, %s" % (v(vKL), XK - 16384, v(vKL)))

    MF32 = "v_mfma_f32_32x32x16_bf16"
    def mf(d, x, y, c): return "%s %s, %s, %s, %s" % (MF32, v(d, 16), v(x, 4), v(y, 4), "0" if c is None else v(c, 16))
    def kv_rd(st, ks):
        base = (st % 3) * SLOT
        a("ds_read_b128 %s, %s offset:%d" % (v(XF + 16 * st + 4 * ks, 4), v(vXR + ks), base))
        for p in range(2):
            for u in range(2):
                a("ds_read_b64_tr_b16 %s, %s offset:%d" % (v(WF + 8 * ks + 4 * p + 2 * u, 2), v(vWR), base + 4096 * ks + 1024 * p + 512 * u))
    def kv_mf(st, ks):
        x = XF + 16 * st + 4 * ks
        first = (st == 0 and ks == 0)
        return [mf(AK, WF + 8 * ks, x, None if first else AK), mf(AV, x, WF + 8 * ks + 4, None if first else AV)]
    for st in range(8):
        a.c("---- KV stage %d" % st)
        a("s_waitcnt vmcnt(%d)" % (0 if (st == 7 and cfg.qearly == 0) else 6))
        a("s_barrier")
        if st == 0: stamp(1)
        D = dma(st + 2) if st + 2 < 8 + cfg.qearly else []
        kv_rd(st, 0); kv_rd(st, 1)
        if st > 0:
            m = kv_mf(st - 1, 2) + kv_mf(st - 1, 3)
            a(m[0]); emit(D[0:1]); a(m[1]); emit(D[1:2]); a(m[2]); emit(D[2:3]); a(m[3])
        else: emit(D[0:3])
        kv_rd(st, 2); kv_rd(st, 3)
        m = kv_mf(st, 0) + kv_mf(st, 1)
        a("s_waitcnt lgkmcnt(15)")
        a(m[0]); emit(D[3:4]); a(m[1]); emit(D[4:5])
        a("s_waitcnt lgkmcnt(10)")
        a(m[2]); emit(D[5:6]); a(m[3])
        if st < 7: a("s_waitcnt lgkmcnt(0)")
    a("s_waitcnt lgkmcnt(5)")
    emit([kv_mf(7, 2)])
    a("s_waitcnt lgkmcnt(0)")
    emit([kv_mf(7, 3)])
    a.c("---- K/V epilogue")
    stamp(2)
    VF = 0
    KF = 80
    QF = 120
    S0, S1 = 128, 144
    MD, MBK = 160, 176
    OA = 192
    NM = 208
    PB = 224
    vM, vA, vB2 = 232, 234, 233
    vL2 = 243
    CV = 220
    sTAG, sNB, sOS, sTAGX, sTMO, sME = 50, 51, 52, 56, 57, 58
    sONE = 62
    a("s_add_u32 %s, %s, 0x%x" % (s(sTAG), s(sEP), TAGINC)); a("s_and_b32 %s, %s, 0xffffff00" % (s(sTAG), s(sTAG)))
    a("s_add_u32 %s, %s, 0x%x" % (s(sEP + 1), s(sEP + 1), TAGINC)); a("s_and_b32 %s, %s, 0xffffff00" % (s(sEP + 1), s(sEP + 1)))
    a("v_mov_b32 %s, %s" % (v(vFV), s(sEP + 1)))
    a("s_min_u32 %s, %s, 4" % (s(sNB), s(sRB)))
    a("s_getreg_b32 %s, hwreg(HW_REG_XCC_ID, 0, 4)" % s(sTAGX))
    a("s_mov_b32 %s, 131072" % s(sT0))
    a("s_or_b32 %s, %s, %s" % (s(sTAGX), s(sTAGX), s(sTAG)))
    a("s_mov_b32 %s, %d" % (s(sTMO), cfg.tmo))
    a("s_mov_b32 %s, 0x3f803f80" % s(sONE)); a("s_mov_b32 %s, 0x3f803f80" % s(sONE + 1))
    a("s_mov_b32 %s, 0x0000ffff" % s(sEXV)); a("s_mov_b32 %s, 0x0000ffff" % s(sEXV + 1))
    for i in range(8): a("v_cvt_pk_bf16_f32 %s, %s, %s" % (v(CV + i), v(AK + 2 * i), v(AK + 2 * i + 1)))
    a("buffer_store_dwordx4 %s, %s, %s, 0 offen sc1" % (v(CV, 4), v(vKS), s(SWS, 4)))
    a("buffer_store_dwordx4 %s, %s, %s, %s offen sc1" % (v(CV + 4, 4), v(vKS), s(SWS, 4), s(sT0)))
    for i in range(8): a("v_cvt_pk_bf16_f32 %s, %s, %s" % (v(CV + 8 + i), v(AV + 2 * i), v(AV + 2 * i + 1)))
    a("buffer_store_dwordx4 %s, %s, %s, 0 offen offset:1024 sc1" % (v(CV + 8, 4), v(vVS), s(SWS, 4)))
    a("buffer_store_dwordx4 %s, %s, %s, 0 offen offset:1536 sc1" % (v(CV + 12, 4), v(vVS), s(SWS, 4)))
    a("ds_write_b128 %s, %s offset:16384" % (v(vKL), v(CV, 4)))
    a("ds_write_b128 %s, %s offset:%d" % (v(vKL), v(CV + 4, 4), 16384 + 2048))
    for st in range(8 + cfg.qearly, 10): emit(dma(st))
    QW = {0: {8: 6, 9: 5, 10: 0}, 1: {8: 10, 9: 4, 10: 1}, 2: {8: 10, 9: 8, 10: 0}}[cfg.qearly]
    PUBST = 8 + cfg.qearly
    vMK, vNEG, vZ = 244, 245, 246
    fill = {8: [], 9: [], 10: []}
    fill[8] += [["v_mov_b32 %s, %s" % (v(vL2), v(vL)), "v_and_b32 %s, 31, %s" % (v(vMK), v(vL)), "v_lshrrev_b32 %s, 5, %s" % (v(vNEG), v(vL))],
                ["v_lshlrev_b32 %s, 2, %s" % (v(vNEG), v(vNEG)), "v_sub_u32 %s, %s, %s" % (v(vMK), v(vMK), v(vNEG)),
                 "v_mov_b32 %s, 0xf149f2ca" % v(vNEG), "v_mov_b32 %s, 0" % v(vZ)]]
    for r in range(0, 16, 2):
        k0, k1 = 8 * (r // 4) + r % 4, 8 * (r // 4) + r % 4 + 1
        fill[8].append(["v_cmp_le_i32 vcc, %d, %s" % (k0, v(vMK)), "v_cmp_le_i32 %s, %d, %s" % (s(sMASK, 2), k1, v(vMK)), "s_nop 0",
                        "v_cndmask_b32 %s, %s, %s, vcc" % (v(MD + r), v(vNEG), v(vZ)), "v_cndmask_b32 %s, %s, %s, %s" % (v(MD + r + 1), v(vNEG), v(vZ), s(sMASK, 2))])
    for r in range(0, 16, 4):
        fill[9].append(["v_sub_f32 %s, %s, %s" % (v(MBK + r + i), v(vNEG), v(MD + r + i)) for i in range(4)])
    for r in range(0, 48, 8): fill[9].append(["v_mov_b64 %s, %s" % (v(VF + r + 2 * i, 2), s(sONE, 2)) for i in range(4)])
    for r in range(48, 80, 8): fill[10].append(["v_mov_b64 %s, %s" % (v(VF + r + 2 * i, 2), s(sONE, 2)) for i in range(4)])
    for st in (8, 9, 10):
        base = (st % 3) * SLOT
        a.c("---- Q stage %d" % st)
        a("s_waitcnt vmcnt(%d)" % QW[st])
        a("s_barrier")
        nch = len(QCH[st])
        def rd(n):
            for ks in range(4):
                for u in range(2):
                    a("ds_read_b64_tr_b16 %s, %s offset:%d" % (v(WF + 16 * (n & 1) + 4 * ks + 2 * u, 2), v(vWQ + 1 if st == 8 else vWQ), (0 if st == 8 else base) + 8192 * n + 2048 * ks + 512 * u))
        if st == 8:
            a("ds_write_b128 %s, %s offset:%d" % (v(vVL), v(CV + 8, 4), XV))
            a("ds_write_b128 %s, %s offset:%d" % (v(vVL), v(CV + 12, 4), XV + 512))
        if st == PUBST:
            a("s_mov_b64 exec, 1")
            a("buffer_store_dword %s, %s, %s, 0 offen sc1" % (v(vFV), v(vFA), s(SWS, 4)))
            a("s_mov_b64 exec, -1")
            stamp(3)
        rd(0)
        F = (dma(10) if st == 8 else []) + fill[st]
        nm = 4 * nch
        for n in range(nch):
            if n + 1 < nch: rd(n + 1)
            c = QCH[st][n]
            for ks in range(4):
                rem = (8 if n + 1 < nch else 0) + 6 - 2 * ks
                a("s_waitcnt lgkmcnt(%d)" % rem)
                a(mf(AQ, WF + 16 * (n & 1) + 4 * ks, XF + 16 * c + 4 * ks, None if (c == 0 and ks == 0) else AQ))
                i = 4 * n + ks
                emit(F[(i * len(F)) // nm:((i + 1) * len(F)) // nm])
    a.c("---- Q epilogue + local exchange")
    a("s_mov_b32 %s, 0x3eb8aa3b" % s(sT0))
    a("s_mov_b32 %s, %s" % (s(sT1), s(sT0)))
    a("v_subrev_u32 %s, %d, %s" % (v(vMK), XK - 16384 - XQ, v(vKL)))
    a("v_add_u32 %s, %s, %s" % (v(vA), s(sM0X), v(vL16)))
    a("v_add_u32 %s, %s, %s" % (v(vB2), s(sM0X), v(vVP)))
    a("v_add_u32 %s, %d, %s" % (v(vM), XK - 16384, v(vA)))
    for t_ in range(2):
        a("ds_read_b128 %s, %s offset:%d" % (v(KF + 4 * (8 + t_), 4), v(vM), 16384 + 1024 * t_))
    a("s_mov_b64 exec, %s" % s(sEXV, 2))
    for t_ in range(2):
        for u in range(2):
            a("ds_read_b128 %s, %s offset:%d" % (v(VF + 8 * (8 + t_) + 4 * u, 4), v(vB2), XV + 1024 * t_ + 512 * u))
    a("s_mov_b64 exec, -1")
    for i in range(16): a("v_mul_f32 %s, %s, %s" % (v(AQ + i), s(sT0), v(AQ + i)))
    for i in range(8): a("v_cvt_pk_bf16_f32 %s, %s, %s" % (v(S0 + i), v(AQ + 2 * i), v(AQ + 2 * i + 1)))
    a("ds_write_b128 %s, %s" % (v(vMK), v(S0, 4)))
    a("ds_write_b128 %s, %s offset:2048" % (v(vMK), v(S0 + 4, 4)))
    a("s_lshl_b32 %s, %s, 2" % (s(sT0), s(sHQ))); a("s_add_u32 %s, %s, %s" % (s(sT0), s(sT0), s(sWV)))
    a("s_lshl_b32 %s, %s, 16" % (s(sOS), s(sRB)))
    a("s_lshl_b32 %s, %s, 10" % (s(sT1), s(sT0))); a("s_add_u32 %s, %s, %s" % (s(sOS), s(sOS), s(sT1)))
    a("s_add_u32 %s, %s, %d" % (s(sOS), s(sOS), O_OFF))
    sHB = 59
    a("s_lshl_b32 %s, %s, 17" % (s(sHB), s(sT0)))
    a("s_lshl_b32 %s, %s, 12" % (s(sT1), s(sRB))); a("s_add_u32 %s, %s, %s" % (s(sHB), s(sHB), s(sT1)))
    a("s_add_u32 %s, %s, %d" % (s(sHB), s(sHB), KV_OFF))
    stamp(4)
    a.c("---- wait for halo flags")
    a("s_cmp_lg_u32 %s, 1" % s(sWV)); a("s_cbranch_scc1 L_b_nopoll2")
    a("s_lshl_b32 %s, 1, %s" % (s(sMASK), s(sNB))); a("s_sub_u32 %s, %s, 1" % (s(sMASK), s(sMASK))); a("s_mov_b32 %s, 0" % s(sMASK + 1))
    a("s_lshl_b32 %s, %s, 3" % (s(sT0), s(sRB))); a("s_add_u32 %s, %s, %s" % (s(sT0), s(sT0), s(sHQ)))
    a("s_lshl_b32 %s, %s, 7" % (s(sT0), s(sT0))); a("s_add_u32 %s, %s, %d" % (s(sT0), s(sT0), F2))
    a("v_and_b32 %s, 3, %s" % (v(vNEG), v(vL2)))
    a("v_lshl_add_u32 %s, %s, 2, %s" % (v(vNEG), v(vNEG), s(sT0)))
    poll("L_b_poll2", vNEG, vZ, SWS, sTAG, sMASK, sCNT)
    a.label("L_b_nopoll2")
    sWL, sWG = sT2, sT3
    a("s_lshl_b32 %s, %s, 14" % (s(sWL), s(sWV)))
    a("s_lshl_b32 %s, %s, 17" % (s(sWG), s(sWV)))
    a("s_waitcnt lgkmcnt(0)")
    a("s_barrier")
    stamp(5)
    for t_ in range(2):
        a("ds_read_b128 %s, %s offset:%d" % (v(QF + 4 * t_, 4), v(vA), XQ + 1024 * t_))
    vm = []
    def wait_vm(tag): a("s_waitcnt vmcnt(%d)" % (len(vm) - 1 - vm.index(tag)))
    def halo(kt):
        def k():
            if kt & 1: a("s_sub_u32 %s, %s, 4096" % (s(sHB), s(sHB)))
            a("buffer_load_dwordx4 %s, %s, %s, %s offen offset:%d sc1" % (v(KF + 4 * kt, 4), v(vL16), s(SWS, 4), s(sHB), 2048 * (kt & 1)))
            vm.append(("k", kt))
        def vv():
            a("s_mov_b64 exec, %s" % s(sEXV, 2))
            for u in range(2):
                a("buffer_load_dwordx4 %s, %s, %s, %s offen offset:%d sc1" % (v(VF + 8 * kt + 4 * u, 4), v(vVP), s(SWS, 4), s(sHB), 2048 * (kt & 1) + 1024 + 512 * u))
                vm.append(("v", kt, u))
            a("s_mov_b64 exec, -1")
        return [k, vv]
    def wo_dma(i):
        a("s_add_u32 m0, %s, %d" % (s(sWL), 1024 * i))
        a("s_add_u32 %s, %s, %d" % (s(sD0), s(sWG), 8192 * i))
        a("buffer_load_dwordx4 %s, %s, %s offen lds" % (v(vWO), s(SWO, 4), s(sD0)))
        vm.append(("wo", i))
    SB = [S0, S1]
    OB = [OA, NM]
    def smf(n, U):
        qt, kt = U
        c = MD if kt == qt + 8 else (MBK if kt == qt else None)
        return mf(SB[n & 1], KF + 4 * kt, QF + 4 * qt, c)
    def pv(U, u):
        qt, kt = U
        return mf(OB[qt], VF + 8 * kt + 4 * u, PB + 4 * u, None if (kt == qt + 8 and u == 0) else OB[qt])
    def unit(n, U, nxt, prev, mem):
        S = SB[n & 1]
        ex = lambda i: a("v_exp_f32 %s, %s" % (v(S + i), v(S + i)))
        cv = lambda i: a("v_cvt_pk_bf16_f32 %s, %s, %s" % (v(PB + i), v(S + 2 * i), v(S + 2 * i + 1)))
        ex(0); ex(1)
        if prev is not None: a(pv(prev, 1))
        ex(2)
        if len(mem) > 0: mem[0]()
        ex(3); ex(4); ex(5)
        if nxt is not None:
            if nxt[0] == 0 and nxt[1] < 8: wait_vm(("k", nxt[1]))
            a(smf(n + 1, nxt))
        ex(6); ex(7)
        for i in range(4): cv(i)
        ex(8); ex(9)
        if U[0] == 0 and U[1] < 8: wait_vm(("v", U[1], 1))
        a(pv(U, 0))
        ex(10)
        if len(mem) > 1: mem[1]()
        for i in range(11, 16): ex(i)
        for i in range(4, 8): cv(i)
    def o_out(qt, O):
        a("v_rcp_f32 %s, %s" % (v(vA), v(O + 8))); a("s_nop 0")
        for i in range(8): a("v_mul_f32 %s, %s, %s" % (v(O + i), v(vA), v(O + i)))
        OP = 248 + 4 * qt
        for i in range(4): a("v_cvt_pk_bf16_f32 %s, %s, %s" % (v(OP + i), v(O + 2 * i), v(O + 2 * i + 1)))
        a("buffer_store_dwordx4 %s, %s, %s, %s offen%s" % (v(OP, 4), v(vL16), s(SWS, 4), s(sOS), HS_))
        if qt == 0: a("s_add_u32 %s, %s, 32768" % (s(sOS), s(sOS)))
    if cfg.fast:
        a.c("---- attention")
        UN = [(1, 9), (0, 8), (1, 8)]
        for kt in range(7, 0, -1): UN += [(0, kt), (1, kt)]
        UN.append((0, 0))
        for f in halo(7): f()
        if cfg.otouch and cfg.local:
            a("v_and_b32 %s, 7, %s" % (v(vNEG), v(vL2))); a("v_bfe_u32 %s, %s, 3, 1" % (v(vZ), v(vL2)))
            a("v_lshlrev_b32 %s, 7, %s" % (v(vNEG), v(vNEG))); a("v_lshl_add_u32 %s, %s, 15, %s" % (v(vNEG), v(vZ), v(vNEG)))
            a("s_mov_b64 exec, 0xffff")
            a("buffer_load_dword %s, %s, %s, %s offen sc1" % (v(vZ), v(vNEG), s(SWS, 4), s(sOS))); vm.append(("t",))
            a("s_mov_b64 exec, -1")
        a("s_waitcnt lgkmcnt(0)")
        a(smf(0, UN[0]))
        a("s_barrier")
        a("s_nop 10")
        nwo = 0
        for n, U in enumerate(UN):
            nxt = UN[n + 1] if n + 1 < len(UN) else None
            if n < 7: mem = halo(6 - n)
            else:
                k = min(2, 16 - nwo)
                mem = [(lambda i=i: wo_dma(i)) for i in range(nwo, nwo + k)]; nwo += k
            if n == 3: stamp(6)
            unit(n, U, nxt, UN[n - 1] if n else None, mem)
            if U[0] == 1 and U[1] in (8, 6, 4, 2):
                nb = (8 - U[1]) // 2
                a("s_cmp_eq_u32 %s, %d" % (s(sNB), nb)); a("s_cbranch_scc1 L_b_fx%d" % nb)
                def t_fx(nb=nb, U=U, k=nwo):
                    a.label("L_b_fx%d" % nb); a(pv(U, 1))
                    for i in range(k, 16): wo_dma(i)
                    a("s_nop 9")
                    a("s_branch L_b_fdone")
                tails.append(t_fx)
        assert nwo == 16
        a("s_nop 1")
        a(pv(UN[-1], 1))
        a.label("L_b_fdone")
        a("s_mov_b32 %s, 0x1f800000" % s(sT0)); a("s_mov_b32 %s, 0x40000000" % s(sT1))
        a("v_subrev_u32 %s, %s, %s" % (v(vM), s(sT0), v(OB[1] + 8)))
        a("v_cmp_lt_u32 %s, %s, %s" % (s(sMASK, 2), s(sT1), v(vM)))
        a("s_nop 7")
        a("v_subrev_u32 %s, %s, %s" % (v(vM), s(sT0), v(OB[0] + 8)))
        a("v_cmp_lt_u32 vcc, %s, %s" % (s(sT1), v(vM)))
        a("s_nop 0")
        a("s_or_b64 vcc, vcc, %s" % s(sMASK, 2))
        a("s_cbranch_scc1 L_b_slow")
        o_out(0, OB[0]); o_out(1, OB[1])
        a.label("L_b_att_done")
    def slow():
        for qt in range(2):
            a.c("---- attention q tile %d (two pass, true max)" % qt)
            a("s_lshl_b32 %s, %s, 1" % (s(sQ), s(sRB))); a("s_add_u32 %s, %s, %d" % (s(sQ), s(sQ), qt))
            q = QF + 4 * qt
            kf = lambda t_: KF + 4 * (qt + 8 - t_)
            cm = lambda t_: MD if t_ == 0 else (MBK if t_ == 8 else None)
            a("v_mov_b32 %s, 0xf149f2ca" % v(vM))
            a(mf(SB[0], kf(0), q, cm(0)))
            for t_ in range(9):
                if t_ < 8: a(mf(SB[(t_ + 1) & 1], kf(t_ + 1), q, cm(t_ + 1)))
                a("s_nop %d" % (10 if t_ == 0 else 1))
                S = SB[t_ & 1]
                for i in range(8): a("v_max3_f32 %s, %s, %s, %s" % (v(vM), v(S + 2 * i), v(S + 2 * i + 1), v(vM)))
                if t_ < 8:
                    a("s_cmp_le_u32 %s, %d" % (s(sQ), t_)); a("s_cbranch_scc1 L_b_p1done%d" % qt)
            a.label("L_b_p1done%d" % qt)
            a("v_mov_b32 %s, %s" % (v(vA), v(vM))); a("s_nop 1")
            a("v_permlane32_swap_b32 %s, %s" % (v(vM), v(vA)))
            a("v_max_f32 %s, %s, %s" % (v(vM), v(vM), v(vA)))
            for i in range(16): a("v_sub_f32 %s, 0, %s" % (v(NM + i), v(vM)))
            for i in range(16): a("v_sub_f32 %s, %s, %s" % (v(SB[0] + i), v(MD + i), v(vM)))
            a("s_nop 1")
            a(mf(SB[0], kf(0), q, SB[0]))
            for t_ in range(9):
                S = SB[t_ & 1]; N = SB[(t_ + 1) & 1]
                if t_ < 7: a(mf(N, kf(t_ + 1), q, NM))
                if t_ == 7:
                    for i in range(16): a("v_sub_f32 %s, %s, %s" % (v(N + i), v(MBK + i), v(vM)))
                    a("s_nop 1")
                    a(mf(N, kf(8), q, N))
                if t_ == 0: a("s_nop 10")
                kt = qt + 8 - t_
                for u in range(2):
                    for i in range(8): a("v_exp_f32 %s, %s" % (v(S + 8 * u + i), v(S + 8 * u + i)))
                    for i in range(4): a("v_cvt_pk_bf16_f32 %s, %s, %s" % (v(PB + 4 * u + i), v(S + 8 * u + 2 * i), v(S + 8 * u + 2 * i + 1)))
                    a("s_nop 1")
                    a(mf(OA, VF + 8 * kt + 4 * u, PB + 4 * u, None if (t_ == 0 and u == 0) else OA))
                if t_ < 8:
                    a("s_cmp_le_u32 %s, %d" % (s(sQ), t_)); a("s_cbranch_scc1 L_b_p2done%d" % qt)
            a.label("L_b_p2done%d" % qt)
            a("s_nop 11")
            o_out(qt, OA)
    if cfg.fast:
        def t_slow():
            a.label("L_b_slow"); slow(); a("s_branch L_b_att_done")
        tails.append(t_slow)
    else:
        for kt in range(7, -1, -1):
            for f in halo(kt): f()
        a("s_waitcnt lgkmcnt(0)"); a("s_barrier")
        for i in range(16): wo_dma(i)
        a("s_waitcnt vmcnt(16)")
        stamp(6)
        slow()
    stamp(7)
    a.c("---- publish o, wo fragments")
    a("s_lshl_b32 %s, %s, 7" % (s(sT0), s(sRB))); a("s_add_u32 %s, %s, %d" % (s(sT0), s(sT0), F4))
    a("s_lshl_b32 %s, %s, 2" % (s(sME), s(sHQ))); a("s_add_u32 %s, %s, %s" % (s(sME), s(sME), s(sT0)))
    a("s_waitcnt vmcnt(0)")
    a("s_barrier")
    a("s_cmp_lg_u32 %s, 0" % s(sWV)); a("s_cbranch_scc1 L_b_nopub4")
    a("v_mov_b32 %s, %s" % (v(vA), s(sME))); a("v_mov_b32 %s, %s" % (v(vB2), s(sTAGX if cfg.local else sTAG)))
    a("s_mov_b64 exec, 1")
    a("buffer_store_dword %s, %s, %s, 0 offen%s" % (v(vB2), v(vA), s(SWS, 4), HS_))
    a("s_mov_b64 exec, -1")
    a.label("L_b_nopub4")
    stamp(8)
    WOF, OF, AC = 0, 128, 192
    a("v_bfe_u32 %s, %s, 2, 2" % (v(224), v(vL2)))
    a("v_lshrrev_b32 %s, 5, %s" % (v(225), v(vL2)))
    a("v_lshl_add_u32 %s, %s, 2, %s" % (v(224), v(225), v(224)))
    a("v_lshlrev_b32 %s, 7, %s" % (v(224), v(224)))
    a("v_bfe_u32 %s, %s, 3, 1" % (v(226), v(vL2)))
    a("v_lshl_add_u32 %s, %s, 6, %s" % (v(224), v(226), v(224)))
    a("v_and_b32 %s, 1, %s" % (v(226), v(vL2)))
    a("v_lshl_add_u32 %s, %s, 5, %s" % (v(224), v(226), v(224)))
    a("v_bfe_u32 %s, %s, 4, 1" % (v(226), v(vL2)))
    a("v_lshl_add_u32 %s, %s, 4, %s" % (v(224), v(226), v(224)))
    a("v_bfe_u32 %s, %s, 1, 1" % (v(226), v(vL2)))
    a("v_lshl_add_u32 %s, %s, 3, %s" % (v(224), v(226), v(224)))
    a("s_lshr_b32 %s, %s, 1" % (s(sT1), s(sWV)))
    a("s_lshl_b32 %s, %s, 15" % (s(sT2), s(sT1)))
    a("v_add_u32 %s, %s, %s" % (v(224), s(sT2), v(224)))
    a("v_xor_b32 %s, 64, %s" % (v(226), v(224)))
    for hd in range(16):
        for ct in range(2):
            for u in range(2):
                a("ds_read_b64_tr_b16 %s, %s offset:%d" % (v(WOF + 8 * hd + 4 * ct + 2 * u, 2), v(224 + 2 * ct), 2048 * hd + 1024 * u))
    a("s_cmp_lg_u32 %s, 1" % s(sWV)); a("s_cbranch_scc1 L_b_nopoll4")
    a("v_and_b32 %s, 7, %s" % (v(227), v(vL2)))
    a("v_lshl_add_u32 %s, %s, 2, %s" % (v(227), v(227), s(sT0)))
    poll_group("L_b_poll4", 227, 228, SWS, sTAGX, sTAG, sCNT, sTMO, sME, sMASK)
    a("s_cmp_lg_u32 %s, 0" % s(sHQ)); a("s_cbranch_scc1 L_b_nopoll4")
    a("s_lshl_b32 %s, %s, 2" % (s(sT2), s(sRB))); a("s_add_u32 %s, %s, %d" % (s(sT2), s(sT2), EPB))
    a("v_mov_b32 %s, %s" % (v(227), s(sT2))); a("v_mov_b32 %s, %s" % (v(228), s(sTAG)))
    a("s_mov_b64 exec, 1")
    a("buffer_store_dword %s, %s, %s, 0 offen sc1" % (v(228), v(227), s(SWS, 4)))
    a("s_mov_b64 exec, -1")
    a.label("L_b_nopoll4")
    a("s_waitcnt lgkmcnt(0)")
    a("s_barrier")
    stamp(9)
    a("s_and_b32 %s, %s, 1" % (s(sT0), s(sWV)))
    a("s_lshl_b32 %s, %s, 16" % (s(sT2), s(sRB))); a("s_lshl_b32 %s, %s, 15" % (s(sT3), s(sT0)))
    a("s_add_u32 %s, %s, %s" % (s(sT2), s(sT2), s(sT3)))
    a("s_lshl_b32 %s, %s, 14" % (s(sT3), s(sT1))); a("s_add_u32 %s, %s, %s" % (s(sT2), s(sT2), s(sT3)))
    a("s_add_u32 %s, %s, %d" % (s(sT2), s(sT2), O_OFF))
    sOL = sOS
    a("s_mov_b32 %s, %s" % (s(sOL), s(sT2)))
    def oload(i):
        a("buffer_load_dwordx4 %s, %s, %s, %s offen offset:%d sc1" % (v(OF + 4 * i, 4), v(vL16), s(SWS, 4), s(sOL), 1024 * (i & 3)))
        if i & 3 == 3 and i < 15: a("s_add_u32 %s, %s, 4096" % (s(sOL), s(sOL)))
    for i in range(cfg.b3pre): oload(i)
    RS = 272
    a("v_and_b32 %s, 31, %s" % (v(224), v(vL2)))
    a("s_lshl_b32 %s, %s, 1" % (s(sT3), s(sT1))); a("s_add_u32 %s, %s, %s" % (s(sT3), s(sT3), s(sT0)))
    a("s_mul_i32 %s, %s, %d" % (s(sT3), s(sT3), 32 * RS))
    a("v_mul_u32_u24 %s, %d, %s" % (v(224), RS, v(224)))
    a("v_lshl_add_u32 %s, %s, 6, %s" % (v(224), v(225), v(224)))
    a("v_add_u32 %s, %s, %s" % (v(224), s(sT3), v(224)))
    a("v_lshrrev_b32 %s, 3, %s" % (v(226), v(vL2)))
    a("s_lshl_b32 %s, %s, 4" % (s(sT3), s(sWV)))
    a("v_add_u32 %s, %s, %s" % (v(226), s(sT3), v(226)))
    a("v_and_b32 %s, 7, %s" % (v(227), v(vL2)))
    a("v_mul_u32_u24 %s, %d, %s" % (v(228), RS, v(226)))
    a("v_lshl_add_u32 %s, %s, 5, %s" % (v(228), v(227), v(228)))
    a("v_lshlrev_b32 %s, 11, %s" % (v(229), v(226)))
    a("v_lshl_add_u32 %s, %s, 4, %s" % (v(229), v(227), v(229)))
    a("s_lshl_b32 %s, %s, 17" % (s(sT2), s(sRB))); a("s_lshl_b32 %s, %s, 7" % (s(sT3), s(sHQ)))
    a("s_add_u32 %s, %s, %s" % (s(sT2), s(sT2), s(sT3))); a("s_add_u32 %s, %s, 1024" % (s(sT2), s(sT2)))
    a("s_add_u32 %s, %s, 16384" % (s(sT3), s(sT2)))
    for i in range(16):
        if i + cfg.b3pre < 16: oload(i + cfg.b3pre)
        a("s_waitcnt vmcnt(%d)" % min(cfg.b3pre, 15 - i))
        for ct in range(2):
            a("%s %s, %s, %s, %s" % (MF32, v(AC + 16 * ct, 16), v(WOF + 8 * i + 4 * ct, 4), v(OF + 4 * i, 4), "0" if i == 0 else v(AC + 16 * ct, 16)))
    stamp(10)
    a("s_nop 10")
    for ct in range(2):
        for q4 in range(4):
            a("ds_write_b128 %s, %s offset:%d" % (v(224), v(AC + 16 * ct + 4 * q4, 4), 128 * ct + 16 * q4))
    a("s_waitcnt lgkmcnt(0)")
    a("s_barrier")
    for e in range(2):
        for kh in range(2):
            for hf in range(2):
                a("ds_read_b128 %s, %s offset:%d" % (v(16 * e + 8 * kh + 4 * hf, 4), v(228), 8 * RS * e + 64 * RS * kh + 16 * hf))
    for e in range(2):
        a("s_waitcnt lgkmcnt(%d)" % (4 - 4 * e))
        for i in range(8): a("v_add_f32 %s, %s, %s" % (v(16 * e + i), v(16 * e + i), v(16 * e + 8 + i)))
        for i in range(4): a("v_cvt_pk_bf16_f32 %s, %s, %s" % (v(32 + 4 * e + i), v(16 * e + 2 * i), v(16 * e + 2 * i + 1)))
        a("buffer_store_dwordx4 %s, %s, %s, %s offen" % (v(32 + 4 * e, 4), v(229), s(SOUT, 4), s(sT2 if e == 0 else sT3)) + cfg.outsc)
    if cfg.stamps: a("s_waitcnt vmcnt(0)")
    stamp(11)
    stamp_flush(12, SWS, 2, sWV)
    a("s_endpgm")
    keep = a.lines; a.lines = []
    for f in tails: f()
    coldB = a.lines; a.lines = keep; del tails[:]

    a.label("L_A")
    if cfg.only == "B": a("s_branch L_end")
    SK, SV, SQ, SH, SO, SWS = 4, 8, 12, 16, 20, 24
    PSK, PSD = 28, 30
    sG, sJ, sWV, sT0, sT1, sT2, sT3, sEP, sTAG, sCNT = 32, 33, 34, 35, 36, 37, 38, 39, 40, 41
    sMASK = 42
    sTAGX, sTMO, sME = 44, 45, 46
    KT, VT, QT, UL, HB = 0, 9216, 17408, 25600, 34816
    HS, US = 4160, 4608
    OT = 0
    stamp(0)
    a("s_load_dwordx2 %s, s[0:1], 8" % s(SK, 2))
    a("s_load_dwordx2 %s, s[0:1], 16" % s(SV, 2))
    a("s_load_dwordx2 %s, s[0:1], 0" % s(SQ, 2))
    a("s_load_dwordx2 %s, s[0:1], 32" % s(SH, 2))
    a("s_load_dwordx2 %s, s[0:1], 72" % s(SO, 2))
    a("s_load_dwordx2 %s, s[0:1], 88" % s(SWS, 2))
    a("s_load_dwordx2 %s, s[0:1], 24" % s(PSK, 2))
    a("s_load_dwordx2 %s, s[0:1], 40" % s(PSD, 2))
    srd(SK, 2 * MB); srd(SV, 2 * MB); srd(SQ, 2 * MB); srd(SH, 2 * MB); srd(SO, 4 * MB); srd(SWS, WS_SIZE)
    if cfg.aprio: a("s_setprio %d" % cfg.aprio)
    a("s_and_b32 %s, s2, 7" % s(sG)); a("s_bfe_u32 %s, s2, 0x50003" % s(sJ))
    vL, vT = 1, 2
    vD0, vD1, vK0, vK1 = 16, 17, 18, 19
    a("v_lshrrev_b32 %s, 6, v0" % v(vT)); a("v_and_b32 %s, 63, v0" % v(vL))
    a("v_readfirstlane_b32 %s, %s" % (s(sWV), v(vT)))
    a("v_lshrrev_b32 %s, 3, v0" % v(vT + 1))
    a("v_and_b32 %s, 7, v0" % v(vT + 2))
    a("v_xor_b32 %s, %s, %s" % (v(vT + 3), v(vT + 2), v(vT)))
    a("v_lshlrev_b32 %s, 4, %s" % (v(vT + 3), v(vT + 3)))
    a("s_lshl_b32 %s, %s, 16" % (s(sT0), s(sJ))); a("s_lshl_b32 %s, %s, 7" % (s(sT1), s(sG)))
    a("s_add_u32 %s, %s, %s" % (s(sT0), s(sT0), s(sT1)))
    a("v_lshl_add_u32 %s, %s, 10, %s" % (v(vD0), v(vT + 1), v(vT + 3)))
    a("v_add_u32 %s, %s, %s" % (v(vD0), s(sT0), v(vD0)))
    a("v_xor_b32 %s, 64, %s" % (v(vD1), v(vD0))); a("v_add_u32 %s, 32768, %s" % (v(vD1), v(vD1)))
    a("v_subrev_u32 %s, 8192, %s" % (v(vK0), v(vD0))); a("v_subrev_u32 %s, 8192, %s" % (v(vK1), v(vD1)))
    a("s_lshl_b32 %s, %s, 10" % (s(sT2), s(sWV)))
    a("s_waitcnt lgkmcnt(0)")
    a("s_cmp_lg_u32 %s, 0" % s(sWV)); a("s_cbranch_scc1 L_a_nok8")
    a("s_mov_b32 m0, %d" % (KT + 8192)); a("s_mov_b32 %s, %d" % (s(sT3), 7 * 8192))
    a("buffer_load_dwordx4 %s, %s, %s offen lds" % (v(vD0), s(SK, 4), s(sT3)))
    a.label("L_a_nok8")
    for (vo, sr, dst) in ((vK0, SK, KT), (vK1, SK, KT + 4096), (vD0, SV, VT), (vD1, SV, VT + 4096)):
        a("s_add_u32 m0, %s, %d" % (s(sT2), dst)); a("s_nop 0")
        a("buffer_load_dwordx4 %s, %s, 0 offen lds" % (v(vo), s(sr, 4)))
    TP, vDD = 20, 24
    a("s_lshl_b32 %s, %s, 9" % (s(sT0), s(sG)))
    a("v_lshl_add_u32 %s, %s, 4, %s" % (v(vT + 4), v(vT + 1), s(sT0)))
    if "t" not in cfg.exp: a("global_load_dwordx4 %s, %s, %s" % (v(TP, 4), v(vT + 4), s(PSK, 2)))
    a("v_lshrrev_b32 %s, 2, %s" % (v(vT + 5), v(vT + 4)))
    if "t" not in cfg.exp: a("global_load_dword %s, %s, %s" % (v(vDD), v(vT + 5), s(PSD, 2)))
    HD = 28
    a("s_lshl_b32 %s, %s, 18" % (s(sT0), s(sG))); a("s_lshl_b32 %s, %s, 13" % (s(sT1), s(sJ)))
    a("s_add_u32 %s, %s, %s" % (s(sT0), s(sT0), s(sT1)))
    a("v_lshl_add_u32 %s, v0, 4, %s" % (v(vT + 6), s(sT0)))
    a("v_subrev_u32 %s, 4, %s" % (v(vT + 7), v(vT + 6)))
    a("s_mov_b32 %s, 4096" % s(sT1))
    a("buffer_load_dwordx4 %s, %s, %s, 0 offen" % (v(HD, 4), v(vT + 6), s(SH, 4)))
    if "p" not in cfg.exp: a("buffer_load_dword %s, %s, %s, 0 offen" % (v(HD + 4), v(vT + 7), s(SH, 4)))
    a("buffer_load_dwordx4 %s, %s, %s, %s offen" % (v(HD + 8, 4), v(vT + 6), s(SH, 4), s(sT1)))
    if "p" not in cfg.exp: a("buffer_load_dword %s, %s, %s, 0 offen offset:4092" % (v(HD + 12), v(vT + 6), s(SH, 4)))
    if cfg.otouch and cfg.local:
        a("v_and_b32 %s, 15, v0" % v(vT + 8)); a("v_lshlrev_b32 %s, 11, %s" % (v(vT + 8), v(vT + 8)))
        a("s_lshl_b32 %s, %s, 17" % (s(sT0), s(sJ))); a("s_lshl_b32 %s, %s, 7" % (s(sT1), s(sG))); a("s_add_u32 %s, %s, %s" % (s(sT0), s(sT0), s(sT1)))
        a("s_lshl_b32 %s, %s, 15" % (s(sT1), s(sWV))); a("s_add_u32 %s, %s, %s" % (s(sT0), s(sT0), s(sT1)))
        a("s_mov_b64 exec, 0xffff")
        a("buffer_load_dword v14, %s, %s, %s offen sc1" % (v(vT + 8), s(SO, 4), s(sT0)))
        a("s_mov_b64 exec, -1")
    NT = 1 if (cfg.otouch and cfg.local) else 0
    a("v_and_b32 %s, 1, v0" % v(vT + 8)); a("v_lshlrev_b32 %s, 12, %s" % (v(vT + 8), v(vT + 8)))
    a("s_lshl_b32 %s, %s, 7" % (s(sT0), s(sG))); a("s_add_u32 %s, %s, %d" % (s(sT0), s(sT0), F1))
    if "f" not in cfg.exp: a("buffer_load_dword v15, %s, %s, %s offen sc1" % (v(vT + 8), s(SWS, 4), s(sT0)))
    NT -= (2 if "p" in cfg.exp else 0) + (1 if "f" in cfg.exp else 0)
    a("s_lshl_b32 %s, %s, 2" % (s(sT0), s(sG))); a("s_add_u32 %s, %s, %d" % (s(sT0), s(sT0), EPA))
    a("s_load_dword %s, %s, %s" % (s(sEP), s(SWS, 2), s(sT0)))
    a("v_mov_b32 %s, 0" % v(vT + 8))
    a("v_lshrrev_b32 %s, 7, v0" % v(vT + 9)); a("v_and_b32 %s, 127, v0" % v(vT + 10))
    a("v_mul_u32_u24 %s, %d, %s" % (v(vT + 9), US, v(vT + 9)))
    a("v_lshl_add_u32 %s, %s, 2, %s" % (v(vT + 9), v(vT + 10), v(vT + 9)))
    a("ds_write_b32 %s, %s offset:%d" % (v(vT + 9), v(vT + 8), UL))
    a("v_lshrrev_b32 %s, 3, %s" % (v(vT + 9), v(vL)))
    a("v_mul_u32_u24 %s, %d, %s" % (v(vT + 9), HS, v(vT + 9)))
    a("v_lshl_add_u32 %s, %s, 2, %s" % (v(vT + 9), v(vT + 2), v(vT + 9)))
    a("ds_write_b32 %s, %s offset:%d" % (v(vT + 9), v(vT + 8), HB))
    vA0, vA1, vUS, vUL = 44, 45, 46, 47
    a("v_lshrrev_b32 %s, 2, %s" % (v(vT + 8), v(vT + 1)))
    a("v_and_b32 %s, 3, %s" % (v(vT + 9), v(vT + 1)))
    a("v_lshlrev_b32 %s, 2, %s" % (v(vT + 9), v(vT + 9)))
    a("v_lshl_add_u32 %s, %s, 10, %s" % (v(vT + 9), v(vT + 2), v(vT + 9)))
    a("v_xor_b32 %s, %s, %s" % (v(vT + 10), v(vT + 8), v(vT + 2)))
    a("v_lshl_add_u32 %s, %s, 4, %s" % (v(vA0), v(vT + 10), v(vT + 9)))
    a("v_add_u32 %s, 1, %s" % (v(vT + 10), v(vT + 2))); a("v_and_b32 %s, 7, %s" % (v(vT + 10), v(vT + 10)))
    a("v_xor_b32 %s, %s, %s" % (v(vT + 10), v(vT + 8), v(vT + 10)))
    a("v_lshl_add_u32 %s, %s, 4, %s" % (v(vA1), v(vT + 10), v(vT + 9)))
    a("s_lshl_b32 %s, %s, 7" % (s(sT0), s(sG)))
    a("v_lshl_add_u32 %s, %s, 4, %s" % (v(vT + 10), v(vT + 2), s(sT0)))
    a("s_lshl_b32 %s, %s, 17" % (s(sT1), s(sJ)))
    a("v_lshl_add_u32 %s, %s, 12, %s" % (v(vUS), v(vT + 1), v(vT + 10)))
    a("v_add_u32 %s, %s, %s" % (v(vUS), s(sT1), v(vUS)))
    a("s_lshl_b32 %s, %s, 12" % (s(sT1), s(sJ)))
    a("v_lshl_add_u32 %s, %s, 17, %s" % (v(vUL), v(vT + 1), v(vT + 10)))
    a("v_add_u32 %s, %s, %s" % (v(vUL), s(sT1), v(vUL)))
    a("s_waitcnt vmcnt(%d) lgkmcnt(0)" % (5 + NT))
    a("s_barrier")
    stamp(1)
    if "e" in cfg.exp: a("s_branch L_a_fin")
    KR, VR = 48, 60
    for jj in range(3): a("ds_read_b32 %s, %s offset:%d" % (v(KR + jj), v(vA0), KT + (5 + jj) * 128))
    for jj in range(8): a("ds_read_b32 %s, %s offset:%d" % (v(KR + 3 + jj), v(vA1), KT + 1024 + jj * 128))
    for jj in range(8): a("ds_read_b32 %s, %s offset:%d" % (v(VR + jj), v(vA0), VT + jj * 128))
    SP, DP, KP, VP, UD, UPK = 68, 76, 78, 100, 116, 132
    for jj in range(4):
        for c in range(2):
            src = v(TP + 2 * c + (jj >> 1))
            a(("v_lshlrev_b32 %s, 16, %s" if jj % 2 == 0 else "v_and_b32 %s, 0xffff0000, %s") % (v(SP + 2 * jj + c), src))
    a("v_lshlrev_b32 %s, 16, %s" % (v(DP), v(vDD))); a("v_and_b32 %s, 0xffff0000, %s" % (v(DP + 1), v(vDD)))
    a("s_waitcnt lgkmcnt(8)")
    for jj in range(11):
        a("v_lshlrev_b32 %s, 16, %s" % (v(KP + 2 * jj), v(KR + jj))); a("v_and_b32 %s, 0xffff0000, %s" % (v(KP + 2 * jj + 1), v(KR + jj)))
    for t in range(16): a("v_mul_f32 %s, %s, %s" % (v(UD + t), v(KP + 6 + t), v(SP + (t & 1))))
    for jj in range(1, 4):
        for t in range(16): a("v_fmac_f32 %s, %s, %s" % (v(UD + t), v(KP + 6 - 2 * jj + t), v(SP + 2 * jj + (t & 1))))
    a("s_waitcnt lgkmcnt(0)")
    for jj in range(8):
        a("v_lshlrev_b32 %s, 16, %s" % (v(VP + 2 * jj), v(VR + jj))); a("v_and_b32 %s, 0xffff0000, %s" % (v(VP + 2 * jj + 1), v(VR + jj)))
    for t in range(16): a("v_mul_f32 %s, %s, %s" % (v(UD + t), v(UD + t), v(VP + t)))
    for c in range(2):
        for e in range(4): a("v_cvt_pk_bf16_f32 %s, %s, %s" % (v(UPK + 4 * c + e), v(UD + 2 * (7 - 2 * e) + c), v(UD + 2 * (6 - 2 * e) + c)))
        a("buffer_store_dwordx4 %s, %s, %s, 0 offen offset:%d%s" % (v(UPK + 4 * c, 4), v(vUS), s(SO, 4), 2048 * c, HS_))
    for t in range(16): a("v_mul_f32 %s, %s, %s" % (v(UD + t), v(UD + t), v(DP + (t & 1))))
    stamp(2)
    a("s_waitcnt vmcnt(%d)" % (2 if cfg.exp else 3 + NT))
    a("v_cmp_ne_u32 vcc, 0, v0")
    a("v_lshlrev_b32 %s, 4, v0" % v(vT)); a("s_nop 0")
    AL = 48
    for c in range(2):
        d = HD + 8 * c
        a("v_cndmask_b32 %s, 0, %s, vcc" % (v(d + 4), v(d + 4)))
        a("v_alignbit_b32 %s, %s, %s, 16" % (v(AL + 4 * c), v(d), v(d + 4)))
        for e in range(1, 4): a("v_alignbit_b32 %s, %s, %s, 16" % (v(AL + 4 * c + e), v(d + e), v(d + e - 1)))
        for cc, src in ((3, d), (2, AL + 4 * c)):
            o = HB + (4 * c + cc) * HS + 24
            a("ds_write_b64 %s, %s offset:%d" % (v(vT), v(src, 2), o))
            a("ds_write_b64 %s, %s offset:%d" % (v(vT), v(src + 2, 2), o + 8))
        for cc, src in ((1, d), (0, AL + 4 * c)):
            a("v_add_u32 %s, %d, %s" % (v(vT + 1 + cc), HB + (4 * c + cc) * HS + 28, v(vT)))
            a("ds_write2_b32 %s, %s, %s offset0:0 offset1:1" % (v(vT + 1 + cc), v(src), v(src + 1)))
            a("ds_write2_b32 %s, %s, %s offset0:2 offset1:3" % (v(vT + 1 + cc), v(src + 2), v(src + 3)))
    a("s_add_u32 %s, %s, 0x%x" % (s(sTAG), s(sEP), TAGINC)); a("s_and_b32 %s, %s, 0xffffff00" % (s(sTAG), s(sTAG)))
    a("s_getreg_b32 %s, hwreg(HW_REG_XCC_ID, 0, 4)" % s(sTAGX))
    a("s_mov_b32 %s, %d" % (s(sTMO), cfg.tmo))
    a("s_or_b32 %s, %s, %s" % (s(sTAGX), s(sTAGX), s(sTAG)))
    def handoff_A(n, F):
        a("s_lshl_b32 %s, %s, 7" % (s(sT0), s(sG))); a("s_add_u32 %s, %s, %d" % (s(sT0), s(sT0), F))
        a("s_lshl_b32 %s, %s, 2" % (s(sME), s(sJ))); a("s_add_u32 %s, %s, %s" % (s(sME), s(sME), s(sT0)))
        a("s_waitcnt vmcnt(0)")
        a("s_barrier")
        a("s_cmp_lg_u32 %s, 0" % s(sWV)); a("s_cbranch_scc1 L_a_nopub%d" % n)
        a("v_mov_b32 %s, %s" % (v(vT), s(sME))); a("v_mov_b32 %s, %s" % (v(vT + 1), s(sTAGX if cfg.local else sTAG)))
        a("s_mov_b64 exec, 1")
        a("buffer_store_dword %s, %s, %s, 0 offen%s" % (v(vT + 1), v(vT), s(SWS, 4), HS_))
        a("s_mov_b64 exec, -1")
        a.label("L_a_nopub%d" % n)
    def wait_A(n, epoch):
        a("s_cmp_lg_u32 %s, 1" % s(sWV)); a("s_cbranch_scc1 L_a_nopoll%d" % n)
        a("v_and_b32 %s, 31, %s" % (v(vT), v(vL)))
        a("v_lshl_add_u32 %s, %s, 2, %s" % (v(vT), v(vT), s(sT0)))
        poll_group("L_a_poll%d" % n, vT, 14, SWS, sTAGX, sTAG, sCNT, sTMO, sME, sMASK)
        if epoch:
            a("s_cmp_lg_u32 %s, 0" % s(sJ)); a("s_cbranch_scc1 L_a_nopoll%d" % n)
            a("s_lshl_b32 %s, %s, 2" % (s(sT2), s(sG))); a("s_add_u32 %s, %s, %d" % (s(sT2), s(sT2), EPA))
            a("v_mov_b32 %s, %s" % (v(vT), s(sT2))); a("v_mov_b32 %s, %s" % (v(vT + 1), s(sTAG)))
            a("s_mov_b64 exec, 1")
            a("buffer_store_dword %s, %s, %s, 0 offen sc1" % (v(vT + 1), v(vT), s(SWS, 4)))
            a("s_mov_b64 exec, -1")
        a.label("L_a_nopoll%d" % n)
        a("s_waitcnt lgkmcnt(0)")
        a("s_barrier")
    handoff_A(1, F1)
    stamp(3)
    QP = 100
    vQ0, vQ1 = 96, 97
    a("v_mov_b32 %s, %s" % (v(vQ0), v(vD0))); a("v_mov_b32 %s, %s" % (v(vQ1), v(vD1)))
    vCA, vCB, vRW = 16, 17, 18
    a("s_lshr_b32 %s, %s, 1" % (s(sT1), s(sWV))); a("s_and_b32 %s, %s, 1" % (s(sT2), s(sWV)))
    a("v_and_b32 %s, 3, %s" % (v(vT + 2), v(vL)))
    a("v_mul_u32_u24 %s, %d, %s" % (v(vCA), HS, v(vT + 2)))
    a("v_lshrrev_b32 %s, 4, %s" % (v(vT + 3), v(vL)))
    a("v_lshl_add_u32 %s, %s, 4, %s" % (v(vCA), v(vT + 3), v(vCA)))
    a("v_and_b32 %s, 12, %s" % (v(vT + 2), v(vL)))
    a("v_lshl_add_u32 %s, %s, 1, %s" % (v(vCA), v(vT + 2), v(vCA)))
    a("s_mul_i32 %s, %s, %d" % (s(sT3), s(sT1), 4 * HS)); a("s_lshl_b32 %s, %s, 8" % (s(sT2), s(sT2)))
    a("s_add_u32 %s, %s, %s" % (s(sT3), s(sT3), s(sT2))); a("s_add_u32 %s, %s, %d" % (s(sT3), s(sT3), HB))
    a("v_add_u32 %s, %s, %s" % (v(vCA), s(sT3), v(vCA)))
    a("v_and_b32 %s, 15, %s" % (v(vT + 4), v(vL)))
    a("v_lshlrev_b32 %s, 1, %s" % (v(vCB), v(vT + 4)))
    a("v_sub_u32 %s, %s, %s" % (v(vCB), v(vCB), v(vT + 3)))
    a("v_lshlrev_b32 %s, 4, %s" % (v(vCB), v(vCB)))
    a("s_mul_i32 %s, %s, %d" % (s(sT3), s(sT1), US)); a("s_sub_u32 %s, %s, %s" % (s(sT3), s(sT3), s(sT2)))
    a("s_add_u32 %s, %s, %d" % (s(sT3), s(sT3), UL + 512 + 16 - 192))
    a("v_add_u32 %s, %s, %s" % (v(vCB), s(sT3), v(vCB)))
    a("v_bfe_u32 %s, %s, 1, 2" % (v(vT + 2), v(vL)))
    a("v_xor_b32 %s, %s, %s" % (v(vT + 2), v(vT + 2), v(vT + 3)))
    a("v_lshlrev_b32 %s, 4, %s" % (v(vT + 2), v(vT + 2)))
    a("v_lshl_add_u32 %s, %s, 6, %s" % (v(vRW), v(vT + 4), v(vT + 2)))
    a("s_lshl_b32 %s, %s, 13" % (s(sT3), s(sWV))); a("s_add_u32 %s, %s, %d" % (s(sT3), s(sT3), HB))
    a("v_add_u32 %s, %s, %s" % (v(vRW), s(sT3), v(vRW)))
    wait_A(1, True)
    stamp(4)
    UT = 48
    for c in range(2): a("buffer_load_dwordx4 %s, %s, %s, 0 offen offset:%d sc1" % (v(UT + 4 * c, 4), v(vUL), s(SO, 4), 2048 * c))
    FA = [136, 196]
    ACC = 56
    FS = [132, 192]
    FS = [128 + 4, 0]
    def fa(st, p): return (136 if st == 0 else 200) + 4 * p
    def fb(st, q):
        if st == 0: return 168 + 4 * q
        return 232 + 4 * q if q < 6 else 88 + 4 * (q - 6)
    def rdA(rr, p):
        st = rr & 1
        return ["ds_read_b64 %s, %s offset:%d" % (v(fa(st, p), 2), v(vCA), 64 * rr + 512 * p),
                "ds_read_b64 %s, %s offset:%d" % (v(fa(st, p) + 2, 2), v(vCA), 64 * rr + 512 * p + 8)]
    def rdB(rr, q):
        return ["ds_read_b128 %s, %s offset:%d" % (v(fb(rr & 1, q), 4), v(vCB), 512 * q + 64 * (3 - rr))]
    for p in range(8):
        for x in rdA(0, p): a(x)
    a("v_lshlrev_b32 %s, 4, v0" % v(vT))
    for c in range(2):
        a("s_waitcnt vmcnt(%d)" % (1 - c))
        a("ds_write_b128 %s, %s offset:%d" % (v(vT), v(UT + 4 * c, 4), UL + US * c + 512))
    a("s_waitcnt lgkmcnt(0)")
    a("s_barrier")
    stamp(5)
    for q in range(8):
        for x in rdB(0, q): a(x)
    a("s_lshl_b32 %s, %s, 10" % (s(sT2), s(sWV)))
    for (vo, dst) in ((vQ0, QT), (vQ1, QT + 4096)):
        a("s_add_u32 m0, %s, %d" % (s(sT2), dst)); a("s_nop 0")
        a("buffer_load_dwordx4 %s, %s, 0 offen lds" % (v(vo), s(SQ, 4)))
    if cfg.aprio: a("s_setprio 0")
    MF16 = "v_mfma_f32_16x16x32_bf16"
    for rr in range(4):
        a.c("---- conv residue %d" % rr)
        a("s_waitcnt lgkmcnt(0)")
        pre = []
        if rr < 3:
            for p in range(8): pre += rdA(rr + 1, p) + rdB(rr + 1, p)
        n = 0
        for p in range(8):
            for i in range(p, 8):
                a("%s %s, %s, %s, %s" % (MF16, v(ACC + 4 * i, 4), v(fa(rr & 1, p), 4), v(fb(rr & 1, i - p), 4), "0" if (rr == 0 and p == 0) else v(ACC + 4 * i, 4)))
                if n < len(pre): a(pre[n])
                n += 1
    stamp(6)
    a("s_barrier")
    a("s_nop 6")
    for i in range(8): a("ds_write_b128 %s, %s offset:%d" % (v(vRW), v(ACC + 4 * i, 4), 1024 * i))
    a("v_bfe_u32 %s, v0, 2, 2" % v(vT))
    a("v_lshlrev_b32 %s, 1, v0" % v(vT + 1))
    a("v_xor_b32 %s, %s, %s" % (v(vT), v(vT), v(vT + 1)))
    a("v_lshlrev_b32 %s, 4, %s" % (v(vT), v(vT)))
    a("v_xor_b32 %s, 16, %s" % (v(vT + 1), v(vT)))
    a("s_waitcnt lgkmcnt(0)")
    a("s_barrier")
    R0 = 136
    for c in range(2):
        for rh in range(2):
            for hf in range(2):
                a("ds_read_b128 %s, %s offset:%d" % (v(R0 + 16 * c + 8 * rh + 4 * hf, 4), v(vT + hf), HB + 8192 * (2 * c + rh)))
    for c in range(2):
        a("s_waitcnt lgkmcnt(%d)" % (4 - 4 * c))
        for i in range(8): a("v_add_f32 %s, %s, %s" % (v(R0 + 16 * c + i), v(R0 + 16 * c + i), v(R0 + 16 * c + 8 + i)))
        for i in range(4): a("v_cvt_pk_bf16_f32 %s, %s, %s" % (v(UT + 4 * c + i), v(R0 + 16 * c + 2 * i), v(R0 + 16 * c + 2 * i + 1)))
        a("buffer_store_dwordx4 %s, %s, %s, 0 offen offset:%d%s" % (v(UT + 4 * c, 4), v(vUL), s(SO, 4), 2048 * c, HS_))
    stamp(7)
    handoff_A(3, F3)
    stamp(8)
    for jj in range(8): a("ds_read_b32 %s, %s offset:%d" % (v(VR + jj), v(vA0), QT + jj * 128))
    a("s_waitcnt lgkmcnt(0)")
    for jj in range(8):
        a("v_lshlrev_b32 %s, 16, %s" % (v(QP + 2 * jj), v(VR + jj))); a("v_and_b32 %s, 0xffff0000, %s" % (v(QP + 2 * jj + 1), v(VR + jj)))
    for t in range(16): a("v_mul_f32 %s, %s, %s" % (v(UD + t), v(UD + t), v(QP + t)))
    a("v_lshlrev_b32 %s, 4, v0" % v(vT + 2))
    a("v_lshrrev_b32 %s, 3, v0" % v(vT + 3)); a("v_and_b32 %s, 7, v0" % v(vT + 4))
    a("v_xor_b32 %s, %s, %s" % (v(vT + 4), s(sWV), v(vT + 4)))
    a("v_lshlrev_b32 %s, 4, %s" % (v(vT + 4), v(vT + 4)))
    a("v_lshl_add_u32 %s, %s, 11, %s" % (v(vT + 3), v(vT + 3), v(vT + 4)))
    a("s_lshl_b32 %s, %s, 17" % (s(sT1), s(sJ))); a("s_lshl_b32 %s, %s, 7" % (s(sT2), s(sG)))
    a("s_add_u32 %s, %s, %s" % (s(sT1), s(sT1), s(sT2)))
    a("v_add_u32 %s, %s, %s" % (v(vT + 3), s(sT1), v(vT + 3)))
    a("v_xor_b32 %s, 64, %s" % (v(vT + 4), v(vT + 3))); a("v_add_u32 %s, 65536, %s" % (v(vT + 4), v(vT + 4)))
    wait_A(3, False)
    stamp(9)
    YT, YP = 136, 144
    for c in range(2): a("buffer_load_dwordx4 %s, %s, %s, 0 offen offset:%d sc1" % (v(YT + 4 * c, 4), v(vUS), s(SO, 4), 2048 * c))
    for c in range(2):
        a("s_waitcnt vmcnt(%d)" % (1 - c))
        for e in range(4):
            a("v_lshlrev_b32 %s, 16, %s" % (v(YP + 4 * e + c), v(YT + 4 * c + e)))
            a("v_and_b32 %s, 0xffff0000, %s" % (v(YP + 4 * e + 2 + c), v(YT + 4 * c + e)))
    for t in range(16): a("v_fmac_f32 %s, %s, %s" % (v(UD + t), v(YP + t), v(QP + t)))
    for t in range(8):
        a("v_cvt_pk_bf16_f32 %s, %s, %s" % (v(YT + t), v(UD + 2 * t), v(UD + 2 * t + 1)))
        a("ds_write_b32 %s, %s offset:%d" % (v(vA0), v(YT + t), OT + 128 * t))
    a("s_waitcnt lgkmcnt(0)")
    a("s_barrier")
    stamp(10)
    for e in range(2): a("ds_read_b128 %s, %s offset:%d" % (v(YP + 4 * e, 4), v(vT + 2), OT + 4096 * e))
    for e in range(2):
        a("s_waitcnt lgkmcnt(%d)" % (1 - e))
        a("buffer_store_dwordx4 %s, %s, %s, 0 offen" % (v(YP + 4 * e, 4), v(vT + 3 + e), s(SO, 4)) + cfg.outsc)
    a.label("L_a_fin")
    if cfg.stamps: a("s_waitcnt vmcnt(0)")
    stamp(11)
    stamp_flush(12, SWS, 2, sWV)
    a.label("L_end")
    a("s_endpgm")
    a.label("L_hot_end")
    for f in tails: f()
    a.lines += coldB
    return a

HDR = open(os.path.join(os.path.dirname(os.path.abspath(__file__)), "..", "cdna_kernels", NAME + ".s.ref")).read() if os.path.exists(os.path.join(os.path.dirname(os.path.abspath(__file__)), "..", "cdna_kernels", NAME + ".s.ref")) else None

def full(cfg):
    a = gen(cfg)
    errs = check(a.lines)
    for e in errs: print(e, file=sys.stderr)
    head = HDR[:HDR.index("; Override launch")]
    out = head + "; @launch grid=(512,1,1) block=(256,1,1) lds=81920\n"
    out += '.amdgcn_target "amdgcn-amd-amdhsa--gfx950"\n.text\n.globl %s_kernel\n.p2align 8\n.type %s_kernel,@function\n%s_kernel:\n' % (NAME, NAME, NAME)
    out += a.text()
    out += HDR[HDR.index('.section .rodata'):]
    return out, errs

if __name__ == "__main__":
    cfg = Cfg()
    outp = sys.argv[1]
    for x in sys.argv[2:]:
        k, val = x.split("=")
        setattr(cfg, k, eval(val))
    txt, errs = full(cfg)
    open(outp, "w").write(txt)
    print("wrote", outp, len(txt), "bytes;", len(errs), "hazards")
```

```python
import sys, os
sys.path.insert(0, os.path.dirname(os.path.abspath(__file__)))
from asmlib import Asm, v, s, check

NAME = "concat_heads__ssm_conv_h3__sliding_block__prompt"
MB = 1 << 20
KV_OFF = 0x10000
O_OFF = 5 * MB
FL = 7 * MB
EPA, EPB = FL, FL + 128
F1, F3, F4 = FL + 0x1000, FL + 0x2000, FL + 0x3000
GOFF = 0x3000
F2, F5 = FL + 0x8000, FL + 0x18000
E2, E4, F4W = FL + 0x400, FL + 0xC00, FL + 0x20000
ST_OFF = 7 * MB + MB // 2
WS_SIZE = 8 * MB
TAGINC = 0x9E377900
SPIN = 200000
MF32 = "v_mfma_f32_32x32x16_bf16"
MF16 = "v_mfma_f32_16x16x32_bf16"

class Cfg:
    stamps = False
    only = None
    rot = 6
    fast = True
    tmo = 96
    slp = 1
    prio = 2
    aprio = 0
    cprio = 0
    pref = 2
    dbg = False
    b3pre = 4
    c3touch = 1
    trig = 0
    hsched = (1, 4, 6)
    wsched = (8, 10, 12, 14)
    tsched = 3
    tlb = 0
    qall = 1
    p2at = 31
    stat = (1, 2, 3, 4)
    pubat = 22
    f2t = 1
    f2own = 0
    hearly = 0
    h7first = 1
    cut = 0
    aosc = ""
    bosc = ""
    map = 1
    h4g = 0
    afirst = 0
    usc1 = 0
    aslp = 1
    a0prio = 3
    hlate = 0
    qat = 0

class G:
    def __init__(self, cfg):
        self.cfg = cfg; self.a = Asm(); self.nst = 0; self.tails = []; self.cold = []
    def stamp(self, i):
        if self.cfg.stamps: self.a("%s %s" % ("s_memtime" if self.cfg.stamps == 2 else "s_memrealtime", s(64 + 2 * i, 2)))
    def stamp_flush(self, wsrd, wv):
        a = self.a
        if not self.cfg.stamps: return
        lab = "L_nost%d" % self.nst; self.nst += 1
        a("s_waitcnt vmcnt(0)"); self.stamp(11)
        a(f"s_cmp_lg_u32 {s(wv)}, 0\ns_cbranch_scc1 {lab}\ns_waitcnt lgkmcnt(0)\ns_lshl_b32 s60, s2, 7\ns_add_u32 s60, s60, {ST_OFF}\nv_mov_b32 v0, 0")
        for i in range(16):
            a(f"v_mov_b32 v2, {s(64 + 2 * i)}\nv_mov_b32 v3, {s(65 + 2 * i)}\nbuffer_store_dwordx2 v[2:3], v0, {s(wsrd, 4)}, s60 offen offset:{8 * i}")
        a.label(lab)
    def srd(self, base, size): self.a(f"s_mov_b32 {s(base + 2)}, {size}\ns_mov_b32 {s(base + 3)}, 0x20000")
    def mark(self, vt, i):
        if self.cfg.dbg:
            self.a(f"s_load_dwordx2 s[96:97], s[0:1], 80\ns_waitcnt lgkmcnt(0)\nv_mov_b32 {v(vt)}, {4 * i}\nv_mov_b32 {v(vt + 1)}, 1\n"
                   f"s_mov_b64 exec, 1\nglobal_atomic_add {v(vt)}, {v(vt + 1)}, s[96:97] sc1\ns_mov_b64 exec, -1")
    def flush_tails(self):
        keep = self.a.lines; self.a.lines = []
        for f in self.tails: f()
        self.cold += self.a.lines; self.a.lines = keep; self.tails = []
    def poll_group(self, lab, w, vaddr, vt, wsrd, stagx, stag, scnt, stmo, sme, sp, slp=None, glob=False):
        a = self.a; cfg = self.cfg
        ld = "buffer_load_dword" + ("x2" if w == 2 else "")
        slp = cfg.slp if slp is None else slp
        if glob: stagx = stag
        a(f"s_mov_b32 {s(scnt)}, {SPIN if glob else s(stmo)}")
        a.label(lab)
        a(f"{ld} {v(vt, w)}, {v(vaddr)}, {s(wsrd, 4)}, 0 offen sc1\ns_waitcnt vmcnt(0)")
        a(f"v_cmp_ne_u32 vcc, {s(stagx)}, {v(vt)}")
        if w == 2: a(f"v_cmp_ne_u32 {s(sp, 2)}, {s(stagx)}, {v(vt + 1)}\ns_sub_u32 {s(scnt)}, {s(scnt)}, 1\ns_or_b64 vcc, vcc, {s(sp, 2)}")
        else: a(f"s_sub_u32 {s(scnt)}, {s(scnt)}, 1\ns_cmp_lg_u64 vcc, 0")
        a(f"s_cbranch_scc0 {lab}_x")
        if slp: a(f"s_sleep {slp}")
        a(f"s_cmp_gt_i32 {s(scnt)}, 0\ns_cbranch_scc1 {lab}")
        if glob:
            self.mark(vt, 0); a.label(lab + "_x"); return
        a(f"s_branch {lab}_r")
        a.label(lab + "_x")
        def tail():
            a.label(lab + "_r")
            self.mark(vt, 2)
            a(f"buffer_wbl2 sc1\ns_waitcnt vmcnt(0)\nv_mov_b32 {v(vt)}, {s(sme)}\nv_mov_b32 {v(vt + 1)}, {s(stag)}\ns_mov_b32 {s(scnt)}, {GOFF}")
            a(f"s_mov_b64 exec, 1\nbuffer_store_dword {v(vt + 1)}, {v(vt)}, {s(wsrd, 4)}, {s(scnt)} offen sc1\ns_mov_b64 exec, -1\ns_mov_b32 {s(stmo)}, {SPIN}")
            a.label(lab + "_gl")
            a(f"{ld} {v(vt, w)}, {v(vaddr)}, {s(wsrd, 4)}, 0 offen sc1\n{ld} {v(vt + 2, w)}, {v(vaddr)}, {s(wsrd, 4)}, {s(scnt)} offen sc1\ns_waitcnt vmcnt(0)")
            a(f"v_cmp_ne_u32 vcc, {s(stagx)}, {v(vt)}\nv_cmp_ne_u32 {s(sp, 2)}, {s(stag)}, {v(vt + 2)}\ns_sub_u32 {s(stmo)}, {s(stmo)}, 1\ns_and_b64 vcc, vcc, {s(sp, 2)}")
            if w == 2:
                a(f"s_cbranch_scc1 {lab}_gr")
                a(f"v_cmp_ne_u32 vcc, {s(stagx)}, {v(vt + 1)}\nv_cmp_ne_u32 {s(sp, 2)}, {s(stag)}, {v(vt + 3)}\ns_nop 0\ns_and_b64 vcc, vcc, {s(sp, 2)}")
            a(f"s_cbranch_scc0 {lab}_gx")
            a.label(lab + "_gr")
            a(f"s_sleep 2\ns_cmp_lg_u32 {s(stmo)}, 0\ns_cbranch_scc1 {lab}_gl")
            self.mark(vt, 1)
            a.label(lab + "_gx")
            a(f"s_mov_b32 {s(stmo)}, 0\nbuffer_inv sc1\ns_waitcnt vmcnt(0)\ns_branch {lab}_x")
        self.tails.append(tail)

def mf(d, x, y, c): return f"{MF32} {v(d, 16)}, {v(x, 4)}, {v(y, 4)}, {'0' if c is None else v(c, 16)}"

def progB(g):
    a, cfg, stamp = g.a, g.cfg, g.stamp
    SX, SW, SWO, SOUT, SWS = 4, 8, 12, 16, 20
    sG, sJ, sRB, sHQ, sWV, sKX, sKW = 24, 25, 26, 27, 28, 29, 34
    T0, T1, T2, T3 = 30, 31, 32, 33
    sM0X, sM0W, sCNT, sQ = 35, 36, 37, 40
    sMASK = 38
    sEP0, sEP1 = 41, 42
    sTAG, sNB, sOS, sTAGX, sTMO, sME, sHB, sWL, sWG, sF4 = 43, 44, 45, 46, 47, 50, 51, 52, 53, 54
    sEXV, sONE = 48, 56
    sRB3, sCQ, sTAG4 = (62, 63, 55) if cfg.map == 0 else (sRB, sHQ, 55)
    assert cfg.map == 1 or cfg.h4g
    XF, WF, AK, AV, AQ = 0, 128, 160, 176, 192
    vX0, vX1, vW0, vW1, vQ0, vWR, vWQ, vWQ2 = 208, 209, 210, 211, 212, 213, 214, 215
    vXR = 216
    vT = 100
    vVS, vKL, vVL, vFA = 220, 221, 222, 223
    vL16, vL, vVP, vFV = 240, 241, 242, 243
    vWO = 244
    vP2, vP4, vM, vB2, vA, vNEG, vZ, vMK = 248, 249, 250, 251, 252, 253, 254, 255
    VF, KF, QF = 0, 80, 120
    S0, S1, PB, MBK, OA, NM, MD = 128, 144, 160, 168, 192, 208, 224
    assert cfg.qall and cfg.map == 1 and not cfg.h4g and not cfg.trig
    SLOT = 24576
    vm = []
    def wait_vm(tag): a("s_waitcnt vmcnt(%d)" % (len(vm) - 1 - vm.index(tag)))
    def vmem(text, tag): a(text); vm.append(tag)

    if cfg.map == 1:
        ids = f"""s_lshr_b32 {s(T0)}, s2, 6
        s_bfe_u32 {s(sHQ)}, s2, 0x30003
        s_lshl2_add_u32 {s(sRB)}, {s(sG)}, {s(T0)}"""
    else:
        ids = f"""s_lshr_b32 {s(T0)}, s2, 5
        s_bfe_u32 {s(sKX)}, s2, 0x20003
        s_and_b32 {s(sKW)}, s2, 1
        s_bfe_u32 {s(sRB)}, s2, 0x20001
        s_lshl2_add_u32 {s(sHQ)}, {s(sKW)}, {s(sKX)}
        s_lshl3_add_u32 {s(sRB)}, {s(sRB)}, {s(T0)}"""
    stamp(0)
    a(f"""s_load_dwordx2 {s(SX, 2)}, s[0:1], 48
    s_load_dwordx2 {s(SW, 2)}, s[0:1], 56
    v_lshrrev_b32 v1, 6, v0
    v_lshrrev_b32 v2, 3, v0
    s_and_b32 {s(sG)}, s2, 7
    v_readfirstlane_b32 {s(sWV)}, v1
    {ids}
    v_lshl_add_u32 v1, v1, 3, v2
    v_and_b32 v2, 7, v0
    v_bfe_u32 v3, v0, 4, 2
    v_xor_b32 v4, v2, v3
    s_lshl_b32 {s(T1)}, {s(sRB)}, 16
    v_lshlrev_b32 v4, 4, v4
    v_lshl_add_u32 v4, v1, 10, v4
    v_add_u32 {v(vX0)}, {s(T1)}, v4
    v_and_b32 v3, 1, v3
    v_xor_b32 v4, 64, {v(vX0)}
    v_lshlrev_b32 v3, 2, v3
    v_add_u32 {v(vX1)}, {8192 - 1024}, v4
    v_xor_b32 v3, v3, v2
    s_lshl_b32 {s(T2)}, {s(sHQ)}, 7
    v_lshl_add_u32 v3, v3, 4, {s(T2)}
    s_movk_i32 {s(T3)}, 3072
    v_mad_u32_u24 {v(vQ0)}, v1, {s(T3)}, v3""")
    if cfg.map == 0:
        a(f"s_lshl1_add_u32 {s(sKX)}, {s(sKX)}, {s(sKW)}")
        if cfg.rot == 1: a(f"s_add_u32 {s(sKX)}, {s(sKX)}, {s(T0)}")
        elif cfg.rot == 2: a(f"s_and_b32 {s(sKW)}, {s(T0)}, 6\ns_add_u32 {s(sKX)}, {s(sKX)}, {s(sKW)}")
        elif cfg.rot == 3: a(f"s_and_b32 {s(sKW)}, {s(T0)}, 4\ns_add_u32 {s(sKX)}, {s(sKX)}, {s(sKW)}\ns_bfe_u32 {s(sKW)}, s2, 0x20001\ns_add_u32 {s(sKX)}, {s(sKX)}, {s(sKW)}")
        elif cfg.rot == 6: a(f"s_and_b32 {s(sKW)}, s2, 6\ns_add_u32 {s(sKX)}, {s(sKX)}, {s(sKW)}")
    elif cfg.rot == 1: a(f"s_lshl1_add_u32 {s(sKX)}, {s(T0)}, {s(sHQ)}")
    elif cfg.rot == 4: a(f"s_mov_b32 {s(sKX)}, {s(sG)}")
    elif cfg.rot == 6: a(f"s_add_u32 {s(sKX)}, {s(sG)}, {s(sHQ)}")
    elif cfg.rot == 7: a(f"s_and_b32 {s(sKX)}, {s(T0)}, 2\ns_lshl1_add_u32 {s(sKX)}, {s(sKX)}, {s(sHQ)}\ns_add_u32 {s(sKX)}, {s(sKX)}, {s(sG)}")
    elif cfg.rot == 8: a(f"s_lshl1_add_u32 {s(sKX)}, {s(T0)}, {s(sHQ)}\ns_add_u32 {s(sKX)}, {s(sKX)}, {s(sG)}")
    else: a(f"s_mov_b32 {s(sKX)}, 0")
    a(f"""v_add_u32 {v(vW0)}, 1024, {v(vQ0)}
    s_lshl_b32 {s(sKX)}, {s(sKX)}, 7
    v_add_u32 {v(vW1)}, {24576 - 1024}, {v(vQ0)}
    s_lshl_b32 {s(sM0X)}, {s(sWV)}, 11
    s_lshl_b32 {s(sM0W)}, {s(sWV)}, 12""")
    g.srd(SX, 2 * MB); g.srd(SW, 3 * MB // 2)
    L = "buffer_load_dwordx4 %s, %s, %s offen%s lds"
    def dma_kv(st):
        base = (st % 3) * SLOT
        def mk(pre, text, i): return lambda: (a(pre) if pre else None, vmem(text, ("d", st, i)))
        return [mk(f"s_and_b32 {s(sKX)}, {s(sKX)}, 0x380\ns_add_u32 m0, {s(sM0X)}, {base}\ns_mul_i32 {s(sKW)}, {s(sKX)}, 1536", L % (v(vX0), s(SX, 4), s(sKX), ""), 0),
                mk("", L % (v(vX1), s(SX, 4), s(sKX), " offset:1024"), 1),
                mk(f"s_add_u32 m0, {s(sM0W)}, {base + 8192}\ns_addk_i32 {s(sKX)}, 128", L % (v(vW0), s(SW, 4), s(sKW), ""), 2),
                mk("", L % (v(vW0), s(SW, 4), s(sKW), " offset:1024"), 3),
                mk("", L % (v(vW1), s(SW, 4), s(sKW), " offset:2048"), 4),
                mk("", L % (v(vW1), s(SW, 4), s(sKW), " offset:3072"), 5)]
    QCH = {8: [0, 1, 2], 9: [3, 4, 5], 10: [6, 7]}
    def dma_q(st):
        base = (st % 3) * SLOT
        out = []
        def mk(pre, text, i): return lambda: (a(pre) if pre else None, vmem(text, ("d", st, i)))
        for n, c in enumerate(QCH[st]):
            out.append(mk(f"s_and_b32 {s(sKX)}, {s(sKX)}, 0x380\ns_add_u32 m0, {s(sM0X)}, {base + n * 8192}\ns_mul_i32 {s(sKW)}, {s(sKX)}, 1536", L % (v(vQ0), s(SW, 4), s(sKW), ""), 2 * n))
            out.append(mk(f"s_addk_i32 {s(sKX)}, 128", L % (v(vW1), s(SW, 4), s(sKW), " offset:1024"), 2 * n + 1))
        return out
    def dma(st): return dma_kv(st) if st < 8 else dma_q(st)
    def last(st): return ("d", st, 5 if st < 10 else 3)
    def run(fs):
        for f in fs: f()
    a("s_waitcnt lgkmcnt(0)")
    run(dma(0)); run(dma(1))
    if not cfg.afirst:
        a("s_branch L_B2")
        progA0(g)
        a.label("L_B2")
    a(f"""s_load_dwordx2 {s(SWS, 2)}, s[0:1], 88
    s_load_dwordx2 {s(SWO, 2)}, s[0:1], 64
    s_load_dwordx2 {s(SOUT, 2)}, s[0:1], 72
    v_and_b32 {v(vL)}, 63, v0
    s_lshr_b32 {s(sJ)}, s2, 3""")
    if cfg.prio: a(f"s_setprio {cfg.prio}")
    if cfg.c3touch:
        a(f"""v_and_b32 v5, 3, v0
        v_bfe_u32 v6, v0, 2, 2
        v_mul_u32_u24 v5, 3072, v5
        s_lshl2_add_u32 {s(T1)}, {s(sJ)}, {s(sWV)}
        v_lshl_add_u32 v5, v6, 10, v5
        s_mul_i32 {s(T1)}, {s(T1)}, {4 * 3072}
        s_mov_b64 exec, 0xfff""")
        vmem(f"buffer_load_dword {v(vT)}, v5, {s(SW, 4)}, {s(T1)} offen offset:384", ("t", 0))
        a("s_mov_b64 exec, -1")
    if cfg.pref == 1:
        a(f"""s_getpc_b64 s[60:61]
        L_pc:
        s_lshl2_add_u32 {s(T1)}, {s(sJ)}, {s(sWV)}
        s_lshl_b32 {s(T1)}, {s(T1)}, 8
        v_lshl_add_u32 v5, {v(vL)}, 7, {s(T1)}
        v_min_u32 v5, L_hot_end-L_pc-4, v5
        s_mov_b64 exec, 3""")
        vmem(f"global_load_dword {v(vT + 1)}, v5, s[60:61]", ("t", 1))
        a("s_mov_b64 exec, -1")
    g.srd(SWO, MB // 2); g.srd(SOUT, 4 * MB); g.srd(SWS, WS_SIZE)
    if cfg.map == 0:
        a(f"""s_lshr_b32 {s(T0)}, s2, 6
        s_and_b32 {s(sCQ)}, {s(sJ)}, 7
        s_lshl2_add_u32 {s(sRB3)}, {s(sG)}, {s(T0)}
        s_lshl_b32 {s(T0)}, {s(sCQ)}, 7
        v_and_b32 v3, 0x7f, v3
        v_add_u32 v3, {s(T0)}, v3""")
    a(f"""v_bfe_u32 v5, v0, 3, 3
    v_lshl_add_u32 {v(vWO)}, v5, 10, v3""")
    for n in range(1, 4): a(f"v_add_u32 {v(vWO + n)}, {7168 * n}, {v(vWO)}")
    a(f"""v_lshlrev_b32 {v(vL16)}, 4, {v(vL)}
    s_and_b32 {s(T0)}, {s(sWV)}, 1
    s_lshr_b32 {s(T1)}, {s(sWV)}, 1
    v_and_b32 v1, 31, v0
    v_bfe_u32 v2, v0, 5, 1
    v_bfe_u32 v3, v0, 1, 3
    s_lshl_b32 {s(T2)}, {s(T0)}, 12
    v_lshl_add_u32 v1, v1, 7, {s(T2)}""")
    for ks in range(4):
        a(f"v_add_u32 v4, {2 * ks}, v2\nv_xor_b32 v4, v4, v3\nv_lshl_add_u32 {v(vXR + ks)}, v4, 4, v1")
    XK, XV, XQ = 73728, 40960, 49152
    a(f"""v_bfe_u32 v4, v0, 2, 2
    v_bfe_u32 v5, v0, 3, 1
    v_xor_b32 v5, {s(T1)}, v5
    v_lshlrev_b32 v5, 6, v5
    v_lshl_add_u32 v5, v4, 7, v5
    v_bfe_u32 v6, v0, 4, 1
    v_lshl_add_u32 v5, v6, 5, v5
    v_and_b32 v7, 3, v0
    v_lshl_add_u32 v5, v7, 3, v5
    v_lshl_add_u32 {v(vWR)}, v2, 11, v5
    v_lshl_add_u32 {v(vWQ)}, v2, 10, v5
    v_add_u32 {v(vWR)}, 8192, {v(vWR)}
    v_add_u32 {v(vWQ2)}, 49152, {v(vWQ)}
    v_and_b32 v8, 15, v0
    v_lshlrev_b32 v8, 4, v8
    v_lshl_add_u32 {v(vVP)}, v2, 8, v8
    v_lshl_add_u32 {v(vVS)}, v6, 17, {v(vVP)}
    s_lshl_b32 {s(T2)}, {s(T1)}, 12
    s_lshl_b32 {s(T3)}, {s(T0)}, 10
    s_add_u32 {s(T2)}, {s(T2)}, {s(T3)}
    v_lshl_add_u32 {v(vVL)}, v6, 11, {v(vVP)}
    v_add_u32 {v(vVL)}, {s(T2)}, {v(vVL)}
    s_add_u32 {s(T2)}, {s(T2)}, {XK - 16384}
    v_add_u32 {v(vKL)}, {s(T2)}, {v(vL16)}""")
    sKS, sKS1 = 58, 59
    a(f"""s_lshl1_add_u32 {s(T2)}, {s(sHQ)}, {s(T1)}
    s_lshl_b32 {s(T2)}, {s(T2)}, 18
    s_lshl1_add_u32 {s(T3)}, {s(sRB)}, {s(T0)}
    s_lshl_b32 {s(T3)}, {s(T3)}, 11
    s_add_u32 {s(T2)}, {s(T2)}, {s(T3)}
    s_add_u32 {s(sKS)}, {s(T2)}, {KV_OFF}
    s_add_u32 {s(sKS1)}, {s(T2)}, {KV_OFF + 131072}
    s_lshl2_add_u32 {s(T0)}, {s(sHQ)}, {s(sWV)}
    s_lshl_b32 {s(sOS)}, {s(sRB)}, 16
    s_lshl_b32 {s(T1)}, {s(T0)}, 10
    s_add_u32 {s(sOS)}, {s(sOS)}, {s(T1)}
    s_add_u32 {s(sOS)}, {s(sOS)}, {O_OFF}
    s_lshl_b32 {s(sHB)}, {s(T0)}, 17
    s_lshl_b32 {s(T1)}, {s(sRB)}, 12
    s_add_u32 {s(sHB)}, {s(sHB)}, {s(T1)}
    s_add_u32 {s(sHB)}, {s(sHB)}, {KV_OFF - 4096}
    s_lshl_b32 {s(sF4)}, {s(sRB)}, 7
    s_add_u32 {s(sF4)}, {s(sF4)}, {F4}
    s_lshl2_add_u32 {s(sME)}, {s(T0)}, {s(sF4)}
    v_and_b32 v1, 31, v0
    v_lshl_add_u32 {v(vP4)}, v1, 2, {s(sF4)}
    s_lshl3_add_u32 {s(T1)}, {s(sRB)}, {s(sHQ)}
    s_lshl_b32 {s(T1)}, {s(T1)}, 7
    s_add_u32 {s(T1)}, {s(T1)}, {F2}
    v_lshl_add_u32 {v(vP2)}, v7, 2, {s(T1)}
    s_mul_i32 {s(T2)}, {s(sWV)}, 1028
    s_add_u32 {s(T2)}, {s(T2)}, {s(T1)}
    s_add_u32 {s(T2)}, {s(T2)}, 1024
    v_mov_b32 {v(vFA)}, {s(T2)}
    s_lshl_b32 {s(sWL)}, {s(sWV)}, 14
    s_lshl_b32 {s(sWG)}, {s(sWV)}, 17
    s_min_u32 {s(sNB)}, {s(sRB)}, 4
    s_getreg_b32 {s(sTAGX)}, hwreg(HW_REG_XCC_ID, 0, 4)
    s_mov_b32 {s(sTMO)}, {cfg.tmo}
    s_mov_b32 {s(sONE)}, 0x3f803f80
    s_mov_b32 {s(sONE + 1)}, 0x3f803f80
    s_mov_b32 {s(sEXV)}, 0xffff
    s_mov_b32 {s(sEXV + 1)}, 0xffff
""")
    vE4, vF4 = 254, 248
    if not cfg.h4g:
        a(f"""s_lshl2_add_u32 {s(T0)}, {s(sRB)}, {EPB}
        s_lshl2_add_u32 {s(T1)}, {s(sWV)}, {s(T0)}
        s_waitcnt lgkmcnt(0)
        s_load_dword {s(sEP0)}, {s(SWS, 2)}, {s(T0)}
        s_load_dword {s(sEP1)}, {s(SWS, 2)}, {s(T1)} offset:4""")
        vmem(f"buffer_load_dword {v(vT + 2)}, {v(vP4)}, {s(SWS, 4)}, 0 offen sc1", ("t", 2))
    else:
        a(f"""s_lshl2_add_u32 {s(T2)}, {s(sHQ)}, {s(sWV)}
        s_lshl_b32 {s(T3)}, {s(sRB)}, 5
        s_add_u32 {s(T2)}, {s(T2)}, {s(T3)}
        s_lshl_b32 {s(T2)}, {s(T2)}, 7
        s_add_u32 {s(T2)}, {s(T2)}, {F4W}
        v_and_b32 v1, 7, v0
        v_lshl_add_u32 {v(vF4)}, v1, 2, {s(T2)}
        s_add_u32 {s(T3)}, {s(T3)}, {E4}
        v_lshl_add_u32 v1, v1, 2, {s(T3)}
        s_lshr_b32 {s(T2)}, {s(sWV)}, 1
        s_lshl1_add_u32 {s(T2)}, {s(sRB3)}, {s(T2)}
        s_lshl_b32 {s(T2)}, {s(T2)}, 11
        s_lshl2_add_u32 {s(T2)}, {s(sCQ)}, {s(T2)}
        s_add_u32 {s(T2)}, {s(T2)}, {F4W}
        v_and_b32 v2, 15, v0
        v_lshl_add_u32 {v(vP4)}, v2, 7, {s(T2)}
        s_lshl_b32 {s(T0)}, {s(sHQ)}, 6
        s_add_u32 {s(T0)}, {s(T0)}, {s(sRB)}
        s_lshl2_add_u32 {s(sF4)}, {s(T0)}, {E2}
        s_lshl2_add_u32 {s(T1)}, {s(sWV)}, {s(sF4)}
        s_lshl3_add_u32 {s(T2)}, {s(sRB3)}, {s(sCQ)}
        s_lshl2_add_u32 {s(sME)}, {s(T2)}, {E4}
        s_waitcnt lgkmcnt(0)
        s_load_dword {s(sEP0)}, {s(SWS, 2)}, {s(sF4)}
        s_load_dword {s(sEP1)}, {s(SWS, 2)}, {s(T1)} offset:4
        s_load_dword {s(sTAG4)}, {s(SWS, 2)}, {s(sME)}""")
        vmem(f"buffer_load_dword {v(vE4)}, v1, {s(SWS, 4)}, 0 offen", ("t", 2))
    if cfg.f2own:
        a(f"""s_lshl3_add_u32 {s(T1)}, {s(sRB)}, {s(sHQ)}
        s_lshl_b32 {s(T1)}, {s(T1)}, 9
        s_add_u32 {s(T1)}, {s(T1)}, {F4W + 0x8000}
        s_lshl_b32 {s(T2)}, {s(sWV)}, 7
        s_add_u32 {s(T2)}, {s(T2)}, {s(T1)}
        v_mov_b32 {v(vFA)}, {s(T2)}
        s_sub_u32 {s(T1)}, {s(T1)}, 4096
        v_mul_u32_u24 v1, {4096 - 128}, v7
        v_sub_u32 {v(vP2)}, {s(T1)}, v1""")
    if cfg.f2t:
        vmem(f"buffer_load_dword {v(vT + 6)}, {v(vP2 if cfg.f2t == 1 else vFA)}, {s(SWS, 4)}, 0 offen sc1", ("t", 6))
    if cfg.tlb:
        a(f"""v_mov_b32 v1, {s(sKS)}
        v_writelane_b32 v1, {s(sOS)}, 1
        s_lshl_b32 {s(T0)}, {s(sRB)}, 17
        v_mov_b32 v2, 0
        s_mov_b64 exec, 3""")
        vmem(f"buffer_load_dword {v(vT + 3)}, v1, {s(SWS, 4)}, 0 offen sc1", ("t", 3))
        a("s_mov_b64 exec, 1")
        vmem(f"buffer_load_dword {v(vT + 4)}, v2, {s(SWO, 4)}, 0 offen", ("t", 4))
        vmem(f"buffer_load_dword {v(vT + 5)}, v2, {s(SOUT, 4)}, {s(T0)} offen offset:1024 sc1", ("t", 5))
        a("s_mov_b64 exec, -1")

    a.c("diagonal mask and later addresses, built while the first tiles are in flight")
    a(f"""v_and_b32 {v(vMK)}, 31, {v(vL)}
    v_lshrrev_b32 {v(vNEG)}, 5, {v(vL)}
    v_lshlrev_b32 {v(vNEG)}, 2, {v(vNEG)}
    v_sub_u32 {v(vMK)}, {v(vMK)}, {v(vNEG)}
    v_mov_b32 {v(vNEG)}, 0xf149f2ca""")
    for r in range(0, 16, 2):
        k0 = 8 * (r // 4) + r % 4
        a(f"""v_cmp_gt_i32 vcc, {k0}, {v(vMK)}
        v_cmp_gt_i32 {s(sMASK, 2)}, {k0 + 1}, {v(vMK)}
        s_nop 0
        v_cndmask_b32 {v(MD + r)}, 0, {v(vNEG)}, vcc
        v_cndmask_b32 {v(MD + r + 1)}, 0, {v(vNEG)}, {s(sMASK, 2)}""")
    a(f"""v_subrev_u32 {v(vMK)}, {XK - 16384 - XQ}, {v(vKL)}
    v_add_u32 {v(vA)}, {s(sM0X)}, {v(vL16)}
    v_add_u32 {v(vB2)}, {s(sM0X)}, {v(vVP)}
    v_add_u32 {v(vM)}, {XK - 16384}, {v(vA)}
    s_lshl_b32 {s(sMASK)}, 1, {s(sNB)}
    s_sub_u32 {s(sMASK)}, {s(sMASK)}, 1
    s_mov_b32 {s(sMASK + 1)}, 0
    s_mov_b32 {s(T1)}, 0x3eb8aa3b
    s_add_u32 {s(T3)}, {s(sOS)}, 32768""")
    def trigger():
        a(f"""s_lshl_b32 {s(T0)}, s2, 7
        s_add_u32 {s(T0)}, {s(T0)}, {F5}
        v_mov_b32 {v(254)}, {s(T0)}
        v_mov_b32 {v(255)}, {s(sTAG)}
        s_mov_b64 exec, 1""")
        vmem(f"buffer_store_dword {v(255)}, {v(254)}, {s(SWS, 4)}, 0 offen", ("trig",))
        a("s_mov_b64 exec, -1")
    def kv_rd(st, ks):
        base = (st % 3) * SLOT
        out = [f"ds_read_b128 {v(XF + 16 * st + 4 * ks, 4)}, {v(vXR + ks)} offset:{base}"]
        for p in range(2):
            for u in range(2):
                out.append(f"ds_read_b64_tr_b16 {v(WF + 8 * ks + 4 * p + 2 * u, 2)}, {v(vWR)} offset:{base + 4096 * ks + 1024 * p + 512 * u}")
        return out
    def kv_mf(st, ks):
        x = XF + 16 * st + 4 * ks
        first = (st == 0 and ks == 0)
        return [mf(AK, WF + 8 * ks, x, None if first else AK), mf(AV, x, WF + 8 * ks + 4, None if first else AV)]
    nop = lambda: None
    for st in range(8):
        a.c("---- KV stage %d" % st)
        wait_vm(last(st))
        a("s_barrier")
        if st == 0: stamp(1)
        if st == 1:
            a(f"""s_add_u32 {s(sTAG)}, {s(sEP0)}, {hex(TAGINC)}
            s_add_u32 {s(sEP1)}, {s(sEP1)}, {hex(TAGINC)}
            s_and_b32 {s(sTAG)}, {s(sTAG)}, 0xffffff00
            s_and_b32 {s(sEP1)}, {s(sEP1)}, 0xffffff00
            s_or_b32 {s(sTAGX)}, {s(sTAGX)}, {s(sTAG)}
            v_mov_b32 {v(vFV)}, {s(sEP1)}""")
            if cfg.h4g: a(f"s_add_u32 {s(sTAG4)}, {s(sTAG4)}, {hex(TAGINC)}")
        if st == 3 and cfg.h4g: a(f"v_add_u32 {v(vE4)}, {hex(TAGINC)}, {v(vE4)}")
        if cfg.trig == st and st >= 1: trigger()
        D = dma(st + 2) if st + 2 <= 8 + cfg.qall else [nop] * 6
        R = kv_rd(st, 0) + kv_rd(st, 1) + kv_rd(st, 2) + kv_rd(st, 3)
        P = (kv_mf(st - 1, 2) + kv_mf(st - 1, 3)) if st > 0 else [""] * 4
        M = kv_mf(st, 0) + kv_mf(st, 1)
        r = lambda i, j: a("\n".join(R[i:j]))
        r(0, 3); a(P[0]); r(3, 5); D[0](); a(P[1]); r(5, 8); a(P[2]); r(8, 10); D[1](); a(P[3]); r(10, 13); D[2]()
        a("s_waitcnt lgkmcnt(8)"); a(M[0]); r(13, 15); D[3](); a(M[1]); r(15, 18)
        a("s_waitcnt lgkmcnt(8)"); a(M[2]); r(18, 20); D[4](); a(M[3]); D[5]()
        if st < 7: a("s_waitcnt lgkmcnt(0)")
    if cfg.qall:
        a("s_waitcnt lgkmcnt(0)")
        wait_vm(last(8))
        a("s_barrier")
        ones = lambda r: f"v_mov_b64 {v(VF + r, 2)}, {s(sONE, 2)}"
        nds = [0]; dsidx = {}
        def qrd(i):
            c, ks = i // 4, i % 4
            st = 8 + c // 3; n = c % 3
            for u in range(2):
                a(f"ds_read_b64_tr_b16 {v(WF + 4 * (i & 7) + 2 * u, 2)}, {v(vWQ2 if st == 8 else vWQ)} offset:{(0 if st == 8 else (st % 3) * SLOT) + 8192 * n + 2048 * ks + 512 * u}")
            nds[0] += 2; dsidx[i] = nds[0]
        def pub2():
            a("s_waitcnt vmcnt(0)\ns_barrier\ns_mov_b64 exec, 1")
            vmem(f"buffer_store_dword {v(vFV)}, {v(vFA)}, {s(SWS, 4)}, 0 offen sc1", ("f2",))
            a("s_mov_b64 exec, -1")
            stamp(3)
        PK = (AK, AK + 4, AV + 8, AV + 12)
        fills = [f"v_sub_f32 {v(MBK + r)}, {v(vNEG)}, {v(MD + r)}" for r in range(16)] + [ones(r) for r in range(0, 80, 2)]
        assert 20 <= cfg.pubat <= 31
        D = dma(10); P = kv_mf(7, 2) + kv_mf(7, 3)
        for i in range(4): a(P[i]); D[i](); qrd(i)
        stamp(2)
        for i in range(32):
            if i + 4 == 12: wait_vm(last(9)); a("s_barrier")
            if i + 4 == 24: wait_vm(last(10)); a("s_barrier")
            if i + 4 < 32: qrd(i + 4)
            a(f"s_waitcnt lgkmcnt({nds[0] - dsidx[i]})")
            a(mf(AQ, WF + 4 * (i & 7), XF + 4 * i, None if i == 0 else AQ))
            for n, at in enumerate(cfg.stat):
                if at != i: continue
                q = (0, 1, 3, 2)[n]
                acc = (AK, AK + 8, AV, AV + 8)[q]
                for k in ((3, 2, 1, 0) if q == 3 else range(4)): a(f"v_cvt_pk_bf16_f32 {v(PK[q] + k)}, {v(acc + 2 * k)}, {v(acc + 2 * k + 1)}")
                vmem(f"buffer_store_dwordx4 {v(PK[q], 4)}, {v(vL16 if q < 2 else vVS)}, {s(SWS, 4)}, {s(sKS1 if q == 1 else sKS)} offen{('', '', ' offset:1024', ' offset:1536')[q]} sc1", ("st", q))
            if i == 8:  a(f"ds_write_b128 {v(vKL)}, {v(PK[0], 4)} offset:16384"); nds[0] += 1
            if i == 10: a(f"ds_write_b128 {v(vKL)}, {v(PK[1], 4)} offset:{16384 + 2048}"); nds[0] += 1
            if i == 12: a(f"ds_write_b128 {v(vVL)}, {v(PK[2], 4)} offset:{XV}"); nds[0] += 1
            if i == 14: a(f"ds_write_b128 {v(vVL)}, {v(PK[3], 4)} offset:{XV + 512}"); nds[0] += 1
            if i == cfg.pubat:
                for x in fills: a(x)
                pub2()
            if i == cfg.p2at: vmem(f"buffer_load_dword {v(vZ)}, {v(vP2)}, {s(SWS, 4)}, 0 offen sc1", ("p2",))
        a.c("---- local K/V (exchanged before the last barrier), Q epilogue")
        a(f"s_mov_b64 exec, {s(sEXV, 2)}")
        for t in range(2):
            for u in range(2): a(f"ds_read_b128 {v(VF + 8 * (8 + t) + 4 * u, 4)}, {v(vB2)} offset:{XV + 1024 * t + 512 * u}")
        a("s_mov_b64 exec, -1")
        for t in range(2): a(f"ds_read_b128 {v(KF + 4 * (8 + t), 4)}, {v(vM)} offset:{16384 + 1024 * t}")
        a("s_nop 3")
        for h in range(2):
            for i in range(8): a(f"v_mul_f32 {v(AQ + 8 * h + i)}, {s(T1)}, {v(AQ + 8 * h + i)}")
            for i in range(4): a(f"v_cvt_pk_bf16_f32 {v(S0 + 4 * h + i)}, {v(AQ + 8 * h + 2 * i)}, {v(AQ + 8 * h + 2 * i + 1)}")
            a(f"ds_write_b128 {v(vMK)}, {v(S0 + 4 * h, 4)} offset:{2048 * h}")
        if cfg.p2at > 31: vmem(f"buffer_load_dword {v(vZ)}, {v(vP2)}, {s(SWS, 4)}, 0 offen sc1", ("p2",))
        a("s_waitcnt lgkmcnt(0)\ns_barrier")
        for t in (1, 0): a(f"ds_read_b128 {v(QF + 4 * t, 4)}, {v(vA)} offset:{XQ + 1024 * t}")
        stamp(4)
    a.c("---- halo flags (first read was issued during the last Q stage)")
    a(f"s_mov_b32 {s(sCNT)}, {SPIN}")
    a.label("L_b_poll2")
    a(f"""s_waitcnt vmcnt(0)
    v_cmp_ne_u32 vcc, {s(sTAG)}, {v(vZ)}
    s_sub_u32 {s(sCNT)}, {s(sCNT)}, 1
    s_and_b64 vcc, vcc, {s(sMASK, 2)}
    s_cbranch_scc0 L_b_poll2_x""")
    if cfg.slp: a(f"s_sleep {cfg.slp}")
    a(f"""buffer_load_dword {v(vZ)}, {v(vP2)}, {s(SWS, 4)}, 0 offen sc1
    s_cmp_lg_u32 {s(sCNT)}, 0
    s_cbranch_scc1 L_b_poll2
    s_waitcnt vmcnt(0)""")
    g.mark(vNEG, 0)
    a.label("L_b_poll2_x")
    stamp(5)
    def halo(b):
        def kl(t): vmem(f"buffer_load_dwordx4 {v(KF + 4 * (6 - 2 * b + t), 4)}, {v(vL16)}, {s(SWS, 4)}, {s(sHB)} offen offset:{2048 * t} sc1", ("k", 6 - 2 * b + t))
        late = (b == 0 and cfg.h7first)
        kl(1)
        if not late: kl(0)
        a(f"s_mov_b64 exec, {s(sEXV, 2)}")
        for t in (1, 0):
            for u in range(2):
                vmem(f"buffer_load_dwordx4 {v(VF + 8 * (6 - 2 * b + t) + 4 * u, 4)}, {v(vVP)}, {s(SWS, 4)}, {s(sHB)} offen offset:{2048 * t + 1024 + 512 * u} sc1", ("v", 6 - 2 * b + t, u))
        a("s_mov_b64 exec, -1")
        if late: kl(0)
        if b < 3: a(f"s_addk_i32 {s(sHB)}, -4096")
    def wo4(q):
        a(f"s_add_u32 m0, {s(sWL)}, {4096 * q}\ns_add_u32 {s(T2)}, {s(sWG)}, {32768 * q}")
        for n in range(4): vmem(L % (v(vWO + n), s(SWO, 4), s(T2), f" offset:{1024 * n}" if n else ""), ("wo", 4 * q + n))
    def otouch():
        a(f"""v_and_b32 {v(vNEG)}, 7, {v(vL)}
        v_bfe_u32 {v(vZ)}, {v(vL)}, 3, 1
        v_lshlrev_b32 {v(vNEG)}, 7, {v(vNEG)}
        v_lshl_add_u32 {v(vNEG)}, {v(vZ)}, 15, {v(vNEG)}
        s_mov_b64 exec, 0xffff""")
        vmem(f"buffer_load_dword {v(vZ)}, {v(vNEG)}, {s(SWS, 4)}, {s(sOS)} offen sc1", ("ot",))
        a("s_mov_b64 exec, -1")
    halo(0)
    if cfg.trig == 11: trigger()
    if not cfg.qall:
        a("s_waitcnt lgkmcnt(0)\ns_barrier")
        for t in (1, 0): a(f"ds_read_b128 {v(QF + 4 * t, 4)}, {v(vA)} offset:{XQ + 1024 * t}")
    SB = [S0, S1]; OB = [OA, NM]
    def smf(n, U):
        qt, kt = U
        return mf(SB[n & 1], KF + 4 * kt, QF + 4 * qt, MD if kt == qt + 8 else (MBK if kt == qt else None))
    def pv(U, u):
        qt, kt = U
        return mf(OB[qt], VF + 8 * kt + 4 * u, PB + 4 * u, None if (kt == qt + 8 and u == 0) else OB[qt])
    def cvt(n, i): return f"v_cvt_pk_bf16_f32 {v(PB + i)}, {v(SB[n & 1] + 2 * i)}, {v(SB[n & 1] + 2 * i + 1)}"
    def unit(n, U, nxt, prev, mem):
        S = SB[n & 1]
        e = lambda i: a(f"v_exp_f32 {v(S + i)}, {v(S + i)}")
        c = lambda i: a(cvt(n, i))
        e(0)
        if prev is not None: a(cvt(n - 1, 7))
        e(1); e(2)
        if prev is not None: a(pv(prev, 1))
        c(0); e(3); e(4); c(1)
        if nxt is not None:
            if nxt[0] == 0 and nxt[1] < 8:
                if cfg.h7first and nxt[1] >= 6: wait_vm(("k", nxt[1]))
                else: wait_vm(("v", nxt[1], 1))
            a(smf(n + 1, nxt))
        e(5); e(6); c(2)
        run(mem)
        e(7); e(8); c(3); e(9); e(10)
        if cfg.h7first and U == (0, 7): wait_vm(("v", 7, 1))
        a(pv(U, 0))
        c(4); e(11); e(12); c(5); e(13); e(14); c(6); e(15)
    OSC = " sc1" if cfg.h4g else ""
    def o_out(qt, O):
        a(f"v_rcp_f32 {v(vA)}, {v(O + 8)}\ns_nop 0")
        for i in range(8): a(f"v_mul_f32 {v(O + i)}, {v(vA)}, {v(O + i)}")
        for i in range(4): a(f"v_cvt_pk_bf16_f32 {v(SB[qt] + i)}, {v(O + 2 * i)}, {v(O + 2 * i + 1)}")
        a(f"buffer_store_dwordx4 {v(SB[qt], 4)}, {v(vL16)}, {s(SWS, 4)}, {s(sOS if qt == 0 else T3)} offen{OSC}")
    assert cfg.fast
    a.c("---- attention without max subtraction; the row sums are checked afterwards")
    UN = [(1, 9), (0, 8), (1, 8)]
    for kt in range(7, 0, -1): UN += [(0, kt), (1, kt)]
    UN.append((0, 0))
    a("s_waitcnt lgkmcnt(%d)" % (0 if cfg.qall else 1))
    a(smf(0, UN[0]))
    a("s_waitcnt lgkmcnt(0)\ns_barrier\ns_nop 9")
    todo = {}
    for b, n in enumerate(cfg.hsched): todo.setdefault(n, []).append(("h", lambda b=b: halo(b + 1)))
    if not cfg.h4g: todo.setdefault(cfg.tsched, []).append(("t", otouch))
    for q, n in enumerate(cfg.wsched): todo.setdefault(n, []).append(("w", lambda q=q: wo4(q)))
    for n, U in enumerate(UN):
        nxt = UN[n + 1] if n + 1 < len(UN) else None
        if n == 3: stamp(6)
        unit(n, U, nxt, UN[n - 1] if n else None, [f for _, f in todo.get(n, [])])
        if U[0] == 1 and U[1] in (8, 6, 4, 2):
            nb = (8 - U[1]) // 2
            a(f"s_cmp_eq_u32 {s(sNB)}, {nb}\ns_cbranch_scc1 L_b_fx{nb}")
            def t_fx(nb=nb, U=U, n=n):
                a.label(f"L_b_fx{nb}")
                a(cvt(n, 7)); a("s_nop 1"); a(pv(U, 1))
                for m in range(n + 1, 18):
                    for k, f in todo.get(m, []):
                        if k != "h": f()
                a("s_nop 9\ns_branch L_b_fdone")
            g.tails.append(t_fx)
    a("s_nop 0"); a(cvt(17, 7)); a("s_nop 1"); a(pv(UN[-1], 1))
    a.label("L_b_fdone")
    a(f"""s_mov_b32 {s(T0)}, 0x1f800000
    s_mov_b32 {s(T1)}, 0x40000000
    v_subrev_u32 {v(vM)}, {s(T0)}, {v(OB[1] + 8)}
    v_cmp_lt_u32 {s(sMASK, 2)}, {s(T1)}, {v(vM)}""")
    a(f"v_rcp_f32 {v(vB2)}, {v(OB[1] + 8)}\ns_nop 0")
    for i in range(8): a(f"v_mul_f32 {v(S1 + 8 + i)}, {v(vB2)}, {v(OB[1] + i)}")
    a(f"""v_subrev_u32 {v(vM)}, {s(T0)}, {v(OB[0] + 8)}
    v_cmp_lt_u32 vcc, {s(T1)}, {v(vM)}
    v_rcp_f32 {v(vA)}, {v(OB[0] + 8)}
    s_or_b64 vcc, vcc, {s(sMASK, 2)}
    s_cbranch_scc1 L_b_slow""")
    for i in range(4): a(f"v_cvt_pk_bf16_f32 {v(S1 + i)}, {v(S1 + 8 + 2 * i)}, {v(S1 + 9 + 2 * i)}")
    a(f"buffer_store_dwordx4 {v(S1, 4)}, {v(vL16)}, {s(SWS, 4)}, {s(T3)} offen{OSC}")
    for i in range(8): a(f"v_mul_f32 {v(OA + i)}, {v(vA)}, {v(OA + i)}")
    for i in range(4): a(f"v_cvt_pk_bf16_f32 {v(S0 + i)}, {v(OA + 2 * i)}, {v(OA + 2 * i + 1)}")
    a(f"buffer_store_dwordx4 {v(S0, 4)}, {v(vL16)}, {s(SWS, 4)}, {s(sOS)} offen{OSC}")
    a.label("L_b_att_done")
    def slow():
        a.label("L_b_slow")
        for qt in range(2):
            a.c("---- attention q tile %d (two pass, true max)" % qt)
            a(f"s_lshl1_add_u32 {s(sQ)}, {s(sRB)}, {qt}")
            q = QF + 4 * qt
            kf = lambda t: KF + 4 * (qt + 8 - t)
            cm = lambda t: MD if t == 0 else (MBK if t == 8 else None)
            a(f"v_mov_b32 {v(vM)}, 0xf149f2ca\ns_nop 0")
            a(mf(SB[0], kf(0), q, cm(0)))
            for t in range(9):
                if t < 8: a(mf(SB[(t + 1) & 1], kf(t + 1), q, cm(t + 1)))
                a("s_nop %d" % (10 if t == 0 else 1))
                S = SB[t & 1]
                for i in range(8): a(f"v_max3_f32 {v(vM)}, {v(S + 2 * i)}, {v(S + 2 * i + 1)}, {v(vM)}")
                if t < 8: a(f"s_cmp_le_u32 {s(sQ)}, {t}\ns_cbranch_scc1 L_b_p1done{qt}")
            a.label(f"L_b_p1done{qt}")
            a(f"v_mov_b32 {v(vA)}, {v(vM)}\ns_nop 1\nv_permlane32_swap_b32 {v(vM)}, {v(vA)}\nv_max_f32 {v(vM)}, {v(vM)}, {v(vA)}")
            for i in range(16): a(f"v_sub_f32 {v(NM + i)}, 0, {v(vM)}")
            for i in range(16): a(f"v_sub_f32 {v(SB[0] + i)}, {v(MD + i)}, {v(vM)}")
            a("s_nop 1")
            a(mf(SB[0], kf(0), q, SB[0]))
            for t in range(9):
                S = SB[t & 1]; N = SB[(t + 1) & 1]
                if t < 7: a(mf(N, kf(t + 1), q, NM))
                if t == 7:
                    for i in range(16): a(f"v_sub_f32 {v(N + i)}, {v(MBK + i)}, {v(vM)}")
                    a("s_nop 1")
                    a(mf(N, kf(8), q, N))
                if t == 0: a("s_nop 10")
                kt = qt + 8 - t
                for u in range(2):
                    for i in range(8): a(f"v_exp_f32 {v(S + 8 * u + i)}, {v(S + 8 * u + i)}")
                    for i in range(4): a(f"v_cvt_pk_bf16_f32 {v(PB + 4 * u + i)}, {v(S + 8 * u + 2 * i)}, {v(S + 8 * u + 2 * i + 1)}")
                    a("s_nop 1")
                    a(mf(OA, VF + 8 * kt + 4 * u, PB + 4 * u, None if (t == 0 and u == 0) else OA))
                if t < 8: a(f"s_cmp_le_u32 {s(sQ)}, {t}\ns_cbranch_scc1 L_b_p2done{qt}")
            a.label(f"L_b_p2done{qt}")
            a("s_nop 11")
            o_out(qt, OA)
        a("s_branch L_b_att_done")
    g.tails.append(slow)
    stamp(7)
    a.c("---- wo fragments, publish o")
    WOF, OF, AC = 0, 128, 192
    a(f"""v_bfe_u32 v224, {v(vL)}, 2, 2
    v_lshrrev_b32 v225, 5, {v(vL)}
    v_lshl_add_u32 v224, v225, 2, v224
    v_lshlrev_b32 v224, 7, v224
    v_bfe_u32 v226, {v(vL)}, 3, 1
    v_lshl_add_u32 v224, v226, 6, v224
    v_and_b32 v226, 1, {v(vL)}
    v_lshl_add_u32 v224, v226, 5, v224
    v_bfe_u32 v226, {v(vL)}, 4, 1
    v_lshl_add_u32 v224, v226, 4, v224
    v_bfe_u32 v226, {v(vL)}, 1, 1
    v_lshl_add_u32 v224, v226, 3, v224
    s_lshr_b32 {s(T1)}, {s(sWV)}, 1
    s_lshl_b32 {s(T2)}, {s(T1)}, 15
    v_add_u32 v224, {s(T2)}, v224
    v_xor_b32 v226, 64, v224
    v_mov_b32 {v(vA)}, {s(sME)}
    v_mov_b32 {v(vB2)}, {s(sTAGX)}
    s_waitcnt vmcnt(2)
    s_barrier""")
    def wrd(hd):
        for ct in range(2):
            for u in range(2): a(f"ds_read_b64_tr_b16 {v(WOF + 8 * hd + 4 * ct + 2 * u, 2)}, {v(224 + 2 * ct)} offset:{2048 * hd + 1024 * u}")
    N1, N2 = (10, 16) if cfg.h4g else (4, 10)
    for hd in range(N1): wrd(hd)
    if cfg.h4g: a(f"s_waitcnt vmcnt(0)\ns_mov_b64 exec, 0xff\nbuffer_store_dword {v(vE4)}, {v(vF4)}, {s(SWS, 4)}, 0 offen sc1\ns_mov_b64 exec, -1")
    else: a(f"s_waitcnt vmcnt(0)\ns_mov_b64 exec, 1\nbuffer_store_dword {v(vB2)}, {v(vA)}, {s(SWS, 4)}, 0 offen\ns_mov_b64 exec, -1")
    stamp(8)
    for hd in range(N1, N2): wrd(hd)
    sOL = sOS
    a(f"""s_and_b32 {s(T0)}, {s(sWV)}, 1
    s_lshl1_add_u32 {s(T2)}, {s(sRB3)}, {s(T0)}
    s_lshl1_add_u32 {s(T2)}, {s(T2)}, {s(T1)}
    s_lshl_b32 {s(T2)}, {s(T2)}, 14
    s_add_u32 {s(sOL)}, {s(T2)}, {O_OFF}""")
    if cfg.h4g:
        a("s_mov_b64 exec, 0xffff")
        g.poll_group("L_b_poll4", 1, vP4, 228, SWS, sTAG4, sTAG4, sCNT, sTMO, sME, sMASK, glob=True)
        a("s_mov_b64 exec, -1")
    else: g.poll_group("L_b_poll4", 1, vP4, 228, SWS, sTAGX, sTAG, sCNT, sTMO, sME, sMASK)
    stamp(9)
    def oload(i):
        a(f"buffer_load_dwordx4 {v(OF + 4 * i, 4)}, {v(vL16)}, {s(SWS, 4)}, {s(sOL)} offen offset:{1024 * (i & 3)} sc1")
        if i & 3 == 3 and i < 15: a(f"s_addk_i32 {s(sOL)}, 4096")
    for i in range(cfg.b3pre): oload(i)
    for hd in range(N2, 16): wrd(hd)
    RS = 272
    fin = f"""v_and_b32 v227, 31, {v(vL)}
    s_lshl1_add_u32 {s(T3)}, {s(T1)}, {s(T0)}
    s_mul_i32 {s(T3)}, {s(T3)}, {32 * RS}
    v_mul_u32_u24 v227, {RS}, v227
    v_lshl_add_u32 v227, v225, 6, v227
    v_add_u32 v227, {s(T3)}, v227
    v_lshrrev_b32 v230, 3, {v(vL)}
    s_lshl_b32 {s(T3)}, {s(sWV)}, 4
    v_add_u32 v230, {s(T3)}, v230
    v_and_b32 v231, 7, {v(vL)}
    v_mul_u32_u24 v228, {RS}, v230
    v_lshl_add_u32 v228, v231, 5, v228
    v_lshlrev_b32 v229, 11, v230
    v_lshl_add_u32 v229, v231, 4, v229
    s_lshl_b32 {s(T2)}, {s(sRB3)}, 17
    s_lshl_b32 {s(T3)}, {s(sCQ)}, 7
    s_add_u32 {s(T2)}, {s(T2)}, {s(T3)}
    s_add_u32 {s(T2)}, {s(T2)}, 1024
    s_add_u32 {s(T3)}, {s(T2)}, 16384""".split("\n")
    for i in range(16):
        if i + cfg.b3pre < 16: oload(i + cfg.b3pre)
        a("s_waitcnt vmcnt(%d)%s" % (min(cfg.b3pre, 15 - i), " lgkmcnt(0)" if i == 0 else ""))
        for ct in range(2):
            a(mf(AC + 16 * ct, WOF + 8 * i + 4 * ct, OF + 4 * i, None if i == 0 else AC + 16 * ct))
            k = 2 * i + ct
            if k < len(fin): a(fin[k])
        if i == 12: a("s_barrier")
    stamp(10)
    if cfg.h4g:
        a(f"""v_mov_b32 {v(vA)}, {s(sF4)}
        v_mov_b32 {v(vB2)}, {s(sTAG)}
        v_writelane_b32 {v(vA)}, {s(sME)}, 1
        v_writelane_b32 {v(vB2)}, {s(sTAG4)}, 1
        s_mov_b64 exec, 3
        buffer_store_dword {v(vB2)}, {v(vA)}, {s(SWS, 4)}, 0 offen
        s_mov_b64 exec, -1
        s_nop 3""")
    else:
        a(f"""s_lshl2_add_u32 {s(T0)}, {s(sRB)}, {EPB}
        v_mov_b32 {v(vA)}, {s(T0)}
        v_mov_b32 {v(vB2)}, {s(sTAG)}
        s_mov_b64 exec, 1
        buffer_store_dword {v(vB2)}, {v(vA)}, {s(SWS, 4)}, 0 offen
        s_mov_b64 exec, -1
        s_nop 4""")
    for ct in range(2):
        for q4 in range(4): a(f"ds_write_b128 v227, {v(AC + 16 * ct + 4 * q4, 4)} offset:{128 * ct + 16 * q4}")
    a("s_waitcnt lgkmcnt(0)\ns_barrier")
    for e in range(2):
        for kh in range(2):
            for hf in range(2): a(f"ds_read_b128 {v(16 * e + 8 * kh + 4 * hf, 4)}, v228 offset:{8 * RS * e + 64 * RS * kh + 16 * hf}")
    for e in range(2):
        a("s_waitcnt lgkmcnt(%d)" % (4 - 4 * e))
        for i in range(8): a(f"v_add_f32 {v(16 * e + i)}, {v(16 * e + i)}, {v(16 * e + 8 + i)}")
        for i in range(4): a(f"v_cvt_pk_bf16_f32 {v(32 + 4 * e + i)}, {v(16 * e + 2 * i)}, {v(16 * e + 2 * i + 1)}")
        a(f"buffer_store_dwordx4 {v(32 + 4 * e, 4)}, v229, {s(SOUT, 4)}, {s(T2 if e == 0 else T3)} offen{cfg.bosc}")
    g.stamp_flush(SWS, sWV)
    a("s_endpgm")
    g.flush_tails()

class RA:
    SK, SV, SQ, SH, SO, SWS = 4, 8, 12, 16, 20, 24
    PSK, PSD = 28, 30
    sG, sJ, sWV, T0, T1, T2, T3, sEP, sTAG, sCNT = 32, 33, 34, 35, 36, 37, 38, 39, 40, 41
    sMASK = 42
    sTAGX, sTMO, sME, sEPB, sM0 = 44, 45, 46, 47, 48
    KT, VT, QT, UL, RB, HB = 0, 9216, 17408, 25600, 34816, 34824
    HS, US, OT = 4160, 4608, 0
    vL, vT = 1, 2
    vD0, vD1, vK0, vK1 = 96, 97, 18, 19
    TP, vDD, HD = 20, 24, 28
    vA0, vA1, vUS, vUL = 44, 45, 46, 47
    vCA, vCB, vRW, vPF, vH0, vH1, vTO = 16, 17, 98, 99, 25, 26, 27

def a_hload(a):
    R = RA
    a(f"""s_movk_i32 {s(R.T3)}, 4096
    buffer_load_dwordx4 {v(R.HD + 2, 4)}, {v(R.vH0)}, {s(R.SH, 4)}, 0 offen
    buffer_load_dwordx4 {v(R.HD + 10, 4)}, {v(R.vH0)}, {s(R.SH, 4)}, {s(R.T3)} offen
    buffer_load_dwordx2 {v(R.HD, 2)}, {v(R.vH1)}, {s(R.SH, 4)}, 0 offen
    buffer_load_dwordx2 {v(R.HD + 8, 2)}, {v(R.vH0)}, {s(R.SH, 4)}, 0 offen offset:4088""")

def progA0(g):
    a, cfg, R = g.a, g.cfg, RA
    a.label("L_A")
    if not cfg.afirst: a("s_cmp_ge_u32 s2, 512\ns_cbranch_scc1 L_end")
    if cfg.only == "B": a("s_branch L_end")
    g.stamp(0)
    if cfg.a0prio: a(f"s_setprio {cfg.a0prio}")
    a(f"""s_load_dwordx2 {s(R.SK, 2)}, s[0:1], 8
    s_load_dwordx2 {s(R.SV, 2)}, s[0:1], 16
    s_load_dwordx2 {s(R.SH, 2)}, s[0:1], 32
    s_load_dwordx2 {s(R.PSK, 2)}, s[0:1], 24
    v_lshrrev_b32 v2, 6, v0
    s_and_b32 {s(R.sG)}, s2, 7
    s_bfe_u32 {s(R.sJ)}, s2, 0x50003
    v_readfirstlane_b32 {s(R.sWV)}, v2
    v_lshrrev_b32 v3, 3, v0
    v_and_b32 v4, 7, v0
    v_xor_b32 v5, v4, v2
    v_lshlrev_b32 v5, 4, v5
    s_lshl_b32 {s(R.T0)}, {s(R.sJ)}, 16
    s_lshl_b32 {s(R.T1)}, {s(R.sG)}, 7
    s_add_u32 {s(R.T0)}, {s(R.T0)}, {s(R.T1)}
    v_lshl_add_u32 {v(R.vD0)}, v3, 10, v5
    v_add_u32 {v(R.vD0)}, {s(R.T0)}, {v(R.vD0)}
    v_xor_b32 {v(R.vD1)}, 64, {v(R.vD0)}
    v_add_u32 {v(R.vD1)}, 32768, {v(R.vD1)}
    v_subrev_u32 {v(R.vK0)}, 8192, {v(R.vD0)}
    v_subrev_u32 {v(R.vK1)}, 8192, {v(R.vD1)}
    s_lshl_b32 {s(R.sM0)}, {s(R.sWV)}, 10
    s_lshl_b32 {s(R.T2)}, {s(R.sG)}, 5
    s_add_u32 {s(R.T2)}, {s(R.T2)}, {s(R.sJ)}
    s_lshl_b32 {s(R.T2)}, {s(R.T2)}, 13
    v_lshl_add_u32 {v(R.vH0)}, v0, 4, {s(R.T2)}
    v_subrev_u32 {v(R.vH1)}, 8, {v(R.vH0)}
    s_lshl_b32 {s(R.T0)}, {s(R.sG)}, 9
    v_lshl_add_u32 v6, v3, 4, {s(R.T0)}""")
    for r in (R.SK, R.SV, R.SH): g.srd(r, 2 * MB)
    a(f"""s_cmp_lg_u32 {s(R.sWV)}, 0
    s_waitcnt lgkmcnt(0)
    global_load_dwordx4 {v(R.TP, 4)}, v6, {s(R.PSK, 2)}
    s_cbranch_scc1 L_a_nok8
    s_mov_b32 m0, {R.KT + 8192}
    s_mov_b32 {s(R.T3)}, {7 * 8192}
    buffer_load_dwordx4 {v(R.vD0)}, {s(R.SK, 4)}, {s(R.T3)} offen lds""")
    a.label("L_a_nok8")
    for (vo, sr, dst) in ((R.vK0, R.SK, R.KT), (R.vK1, R.SK, R.KT + 4096), (R.vD0, R.SV, R.VT), (R.vD1, R.SV, R.VT + 4096)):
        a(f"s_add_u32 m0, {s(R.sM0)}, {dst}\ns_nop 0\nbuffer_load_dwordx4 {v(vo)}, {s(sr, 4)}, 0 offen lds")
    if not cfg.hlate: a_hload(a)
    g.stamp(12)
    a("s_branch L_A1")

def progA(g):
    a, cfg = g.a, g.cfg
    def stamp(i):
        g.stamp(i)
        if cfg.cut == i: a('s_branch L_a_noepoch')
    globals().update({k: x for k, x in vars(RA).items() if not k.startswith("_")})
    a.label("L_A1")
    a(f"""s_load_dwordx2 {s(SQ, 2)}, s[0:1], 0
    s_load_dwordx2 {s(SO, 2)}, s[0:1], 72
    s_load_dwordx2 {s(SWS, 2)}, s[0:1], 88
    s_load_dwordx2 {s(PSD, 2)}, s[0:1], 40""")
    g.srd(SQ, 2 * MB); g.srd(SO, 4 * MB); g.srd(SWS, WS_SIZE)
    a(f"""v_and_b32 {v(vL)}, 63, v0
    v_lshrrev_b32 v7, 2, v6
    s_add_u32 {s(T0)}, {s(T0)}, {F1}
    v_lshl_add_u32 {v(vPF)}, {v(vL)}, 3, {s(T0)}
    s_lshl2_add_u32 {s(sME)}, {s(sJ)}, {s(sWV)}
    s_lshl2_add_u32 {s(sME)}, {s(sME)}, {s(T0)}
    v_and_b32 v8, 15, v0
    v_lshl_add_u32 v8, v2, 4, v8
    s_lshl_b32 {s(T0)}, {s(sJ)}, 17
    s_add_u32 {s(T0)}, {s(T0)}, {s(T1)}
    v_lshl_add_u32 {v(vTO)}, v8, 11, {s(T0)}
""")
    def small():
        a(f"""s_movk_i32 {s(T3)}, 4096
        global_load_dword {v(vDD)}, v7, {s(PSD, 2)}
        buffer_load_dwordx2 v[14:15], {v(vPF)}, {s(SWS, 4)}, {s(T3)} offen sc1
        buffer_load_dwordx2 v[12:13], {v(vPF)}, {s(SWS, 4)}, 0 offen sc1""")
        if not cfg.usc1:
            a(f"""s_mov_b64 exec, 0xffff
            buffer_load_dword v14, {v(vTO)}, {s(SO, 4)}, 0 offen sc1
            s_mov_b64 exec, -1""")
    NLATE = -1
    a(f"""v_mov_b32 v10, 0
    v_lshrrev_b32 v8, 7, v0
    v_and_b32 v9, 127, v0
    v_mul_u32_u24 v8, {US}, v8
    v_lshl_add_u32 v8, v9, 2, v8
    ds_write_b32 v8, v10 offset:{UL}
    v_lshrrev_b32 v8, 3, {v(vL)}
    v_mul_u32_u24 v8, {HS}, v8
    v_lshl_add_u32 v8, v4, 2, v8
    ds_write_b32 v8, v10 offset:{HB}
    v_lshrrev_b32 v8, 2, v3
    v_and_b32 v9, 3, v3
    v_lshlrev_b32 v9, 2, v9
    v_lshl_add_u32 v9, v4, 10, v9
    v_xor_b32 v11, v8, v4
    v_lshl_add_u32 {v(vA0)}, v11, 4, v9
    v_add_u32 v11, 1, v4
    v_and_b32 v11, 7, v11
    v_xor_b32 v11, v8, v11
    v_lshl_add_u32 {v(vA1)}, v11, 4, v9
    v_lshl_add_u32 v11, v4, 4, {s(T1)}
    s_lshl_b32 {s(T0)}, {s(sJ)}, 17
    v_lshl_add_u32 {v(vUS)}, v3, 12, v11
    v_add_u32 {v(vUS)}, {s(T0)}, {v(vUS)}
    s_lshl_b32 {s(T0)}, {s(sJ)}, 12
    v_lshl_add_u32 {v(vUL)}, v3, 17, v11
    v_add_u32 {v(vUL)}, {s(T0)}, {v(vUL)}""")
    a(f"""s_lshr_b32 {s(T1)}, {s(sWV)}, 1
    s_and_b32 {s(T2)}, {s(sWV)}, 1
    v_and_b32 v4, 3, v0
    v_mul_u32_u24 {v(vCA)}, {HS}, v4
    v_lshrrev_b32 v5, 4, {v(vL)}
    v_lshl_add_u32 {v(vCA)}, v5, 4, {v(vCA)}
    v_and_b32 v4, 12, v0
    v_lshl_add_u32 {v(vCA)}, v4, 1, {v(vCA)}
    s_mul_i32 {s(T3)}, {s(T1)}, {4 * HS}
    s_lshl_b32 {s(T2)}, {s(T2)}, 8
    s_add_u32 {s(T3)}, {s(T3)}, {s(T2)}
    s_add_u32 {s(T3)}, {s(T3)}, {HB}
    v_add_u32 {v(vCA)}, {s(T3)}, {v(vCA)}
    v_and_b32 v8, 15, v0
    v_lshlrev_b32 {v(vCB)}, 1, v8
    v_sub_u32 {v(vCB)}, {v(vCB)}, v5
    v_lshlrev_b32 {v(vCB)}, 4, {v(vCB)}
    s_mul_i32 {s(T3)}, {s(T1)}, {US}
    s_sub_u32 {s(T3)}, {s(T3)}, {s(T2)}
    s_add_u32 {s(T3)}, {s(T3)}, {UL + 512 + 16 - 192}
    v_add_u32 {v(vCB)}, {s(T3)}, {v(vCB)}
    v_bfe_u32 v4, v0, 1, 2
    v_xor_b32 v4, v4, v5
    v_lshlrev_b32 v4, 4, v4
    v_lshl_add_u32 {v(vRW)}, v8, 6, v4
    s_lshl_b32 {s(T3)}, {s(sWV)}, 13
    s_add_u32 {s(T3)}, {s(T3)}, {RB}
    v_add_u32 {v(vRW)}, {s(T3)}, {v(vRW)}
    s_getreg_b32 {s(sTAGX)}, hwreg(HW_REG_XCC_ID, 0, 4)
    s_mov_b32 {s(sTMO)}, {cfg.tmo}
    s_lshl2_add_u32 {s(T0)}, {s(sG)}, {EPA}
    s_waitcnt lgkmcnt(0)
    s_load_dword {s(sEP)}, {s(SWS, 2)}, {s(T0)}""")
    SP, DP, KP, VP, UD, UPK = 68, 76, 136, 100, 116, 160
    KR, VR = 48, 60
    if cfg.aprio != cfg.a0prio: a(f"s_setprio {cfg.aprio}")
    a(f"s_waitcnt vmcnt({NLATE + 1 + (0 if cfg.hlate else 4)})")
    for jj in range(4):
        for c in range(2):
            a(("v_lshlrev_b32 %s, 16, %s" if jj % 2 == 0 else "v_and_b32 %s, 0xffff0000, %s") % (v(SP + 2 * jj + c), v(TP + 2 * c + (jj >> 1))))
    a("s_barrier")
    stamp(1)
    for jj in range(3): a(f"ds_read_b32 {v(KR + jj)}, {v(vA0)} offset:{KT + (5 + jj) * 128}")
    for jj in range(8): a(f"ds_read_b32 {v(KR + 3 + jj)}, {v(vA1)} offset:{KT + 1024 + jj * 128}")
    for jj in range(8): a(f"ds_read_b32 {v(VR + jj)}, {v(vA0)} offset:{VT + jj * 128}")
    def unpack(d, src): a(f"v_lshlrev_b32 {v(d)}, 16, {v(src)}\nv_and_b32 {v(d + 1)}, 0xffff0000, {v(src)}")
    a("s_waitcnt lgkmcnt(8)")
    for jj in range(11): unpack(KP + 2 * jj, KR + jj)
    for t in range(16): a(f"v_mul_f32 {v(UD + t)}, {v(KP + 6 + t)}, {v(SP + (t & 1))}")
    for jj in range(1, 4):
        for t in range(16): a(f"v_fmac_f32 {v(UD + t)}, {v(KP + 6 - 2 * jj + t)}, {v(SP + 2 * jj + (t & 1))}")
    small()
    a("s_waitcnt lgkmcnt(0)")
    for jj in range(8): unpack(VP + 2 * jj, VR + jj)
    for c in range(2):
        for t in range(8): a(f"v_mul_f32 {v(UD + 2 * t + c)}, {v(UD + 2 * t + c)}, {v(VP + 2 * t + c)}")
        for e in range(4): a(f"v_cvt_pk_bf16_f32 {v(UPK + 4 * c + e)}, {v(UD + 2 * (7 - 2 * e) + c)}, {v(UD + 2 * (6 - 2 * e) + c)}")
        a(f"buffer_store_dwordx4 {v(UPK + 4 * c, 4)}, {v(vUS)}, {s(SO, 4)}, 0 offen offset:{2048 * c}" + (" sc1" if cfg.usc1 else ""))
    stamp(2)
    AL = 48
    a(f"""s_add_u32 {s(sTAG)}, {s(sEP)}, {hex(TAGINC)}
    s_and_b32 {s(sTAG)}, {s(sTAG)}, 0xffffff00
    s_or_b32 {s(sTAGX)}, {s(sTAGX)}, {s(sTAG)}
    v_cmp_ne_u32 vcc, 0, v0
    v_lshlrev_b32 v2, 4, v0
    v_mov_b32 v10, {s(sME)}
    v_mov_b32 v11, {s(sTAGX)}""")
    def publish(sc="", n=0): a(f"s_waitcnt vmcnt({n})\ns_mov_b64 exec, 1\nbuffer_store_dword v11, v10, {s(SWS, 4)}, 0 offen{sc}\ns_mov_b64 exec, -1")
    HC = 168
    def hprep():
        for c in range(2):
            d = HD + 8 * c
            a(f"v_cndmask_b32 {v(d)}, 0, {v(d)}, vcc\nv_cndmask_b32 {v(d + 1)}, 0, {v(d + 1)}, vcc")
            for e in range(4): a(f"v_alignbit_b32 {v(HC + 12 * c + e)}, {v(d + 1 + e)}, {v(d + e)}, 16")
            for e in range(4): a(f"v_mov_b32 {v(HC + 12 * c + 4 + e)}, {v(d + 1 + e)}")
            for e in range(4): a(f"v_alignbit_b32 {v(HC + 12 * c + 8 + e)}, {v(d + 2 + e)}, {v(d + 1 + e)}, 16")
    def hwrite():
        for c in range(2):
            for cc in range(4):
                src = HC + 12 * c + 4 * cc if cc < 3 else HD + 8 * c + 2
                a(f"ds_write_b128 v2, {v(src, 4)} offset:{HB + (4 * c + cc) * HS + 24}")
    usc = ""
    if cfg.hlate == 2:
        publish(usc); stamp(3)
    elif cfg.hlate:
        a_hload(a); publish(usc, 4); stamp(3)
        a("s_waitcnt vmcnt(1)"); hprep(); hwrite()
    elif cfg.hearly:
        publish(usc); stamp(3)
    elif cfg.usc1:
        a("s_waitcnt vmcnt(2)"); hprep(); hwrite(); publish(usc); stamp(3)
    else:
        a("s_waitcnt vmcnt(2)"); hprep(); publish(usc); stamp(3); hwrite()
    g.poll_group("L_a_poll1", 2, vPF, 12, SWS, sTAGX, sTAG, sCNT, sTMO, sME, sMASK, cfg.aslp)
    a(f"v_mov_b32 v11, {s(sTAGX)}")
    stamp(4)
    UT = 56
    for c in range(2): a(f"buffer_load_dwordx4 {v(UT + 4 * c, 4)}, {v(vUL)}, {s(SO, 4)}, 0 offen offset:{2048 * c} sc1")
    if cfg.hlate == 2: a_hload(a)
    def qload():
        for (vo, dst) in ((vD0, QT), (vD1, QT + 4096)):
            a(f"s_add_u32 m0, {s(sM0)}, {dst}\ns_nop 0\nbuffer_load_dwordx4 {v(vo)}, {s(SQ, 4)}, 0 offen lds")
    a(f"v_lshlrev_b32 {v(DP)}, 16, {v(vDD)}\nv_and_b32 {v(DP + 1)}, 0xffff0000, {v(vDD)}")
    for t in range(16): a(f"v_mul_f32 {v(UD + t)}, {v(UD + t)}, {v(DP + (t & 1))}")
    a(f"v_add_u32 {v(vPF)}, 4096, {v(vPF)}\ns_addk_i32 {s(sME)}, 4096\nv_add_u32 v10, 4096, v10")
    for c in range(2):
        a(f"s_waitcnt vmcnt({1 - c + (4 if cfg.hlate == 2 else 0)})\nds_write_b128 v2, {v(UT + 4 * c, 4)} offset:{UL + US * c + 512}")
    if cfg.hlate == 2:
        a("v_cmp_ne_u32 vcc, 0, v0\ns_waitcnt vmcnt(0)\ns_nop 0"); hprep(); hwrite()
    a("s_waitcnt lgkmcnt(0)\ns_barrier")
    stamp(5)
    ACC = 56
    fa = lambda st, p: (136 if st == 0 else 200) + 4 * p
    fb = lambda st, q: (168 + 4 * q) if st == 0 else (232 + 4 * q if q < 6 else 88 + 4 * (q - 6))
    def rdA(rr, p):
        return [f"ds_read_b64 {v(fa(rr & 1, p), 2)}, {v(vCA)} offset:{64 * rr + 512 * p}", f"ds_read_b64 {v(fa(rr & 1, p) + 2, 2)}, {v(vCA)} offset:{64 * rr + 512 * p + 8}"]
    def rdB(rr, q): return [f"ds_read_b128 {v(fb(rr & 1, q), 4)}, {v(vCB)} offset:{512 * q + 64 * (3 - rr)}"]
    if cfg.aprio != cfg.cprio: a(f"s_setprio {cfg.cprio}")
    first = rdA(0, 0) + sum((rdB(0, q) for q in range(8)), []) + sum((rdA(0, p) for p in range(1, 8)), [])
    a("\n".join(first[:12]))
    for rr in range(4):
        a.c("---- conv residue %d" % rr)
        if cfg.qat == rr: qload()
        if rr: a("s_waitcnt lgkmcnt(0)")
        pre = []
        if rr < 3:
            for p in range(8): pre += rdA(rr + 1, p) + rdB(rr + 1, p)
        n = 0
        for p in range(8):
            for i in range(p, 8):
                if rr == 0 and p == 0:
                    a("s_waitcnt lgkmcnt(%d)" % (9 - i + min(2 * i, 12)))
                if rr == 0 and p == 1 and i == 1: a("s_waitcnt lgkmcnt(0)")
                a(f"{MF16} {v(ACC + 4 * i, 4)}, {v(fa(rr & 1, p), 4)}, {v(fb(rr & 1, i - p), 4)}, {'0' if (rr == 0 and p == 0) else v(ACC + 4 * i, 4)}")
                if rr == 0 and p == 0:
                    a("\n".join(first[12 + 2 * i:14 + 2 * i]))
                else:
                    if n < len(pre): a(pre[n])
                    n += 1
    stamp(6)
    if cfg.aprio != cfg.cprio: a(f"s_setprio {cfg.aprio}")
    a(f"""s_barrier
    v_bfe_u32 v3, v0, 2, 2
    v_lshlrev_b32 v4, 1, v0
    v_xor_b32 v3, v3, v4
    v_lshlrev_b32 v3, 4, v3
    v_xor_b32 v4, 16, v3""")
    for i in range(8): a(f"ds_write_b128 {v(vRW)}, {v(ACC + 4 * i, 4)} offset:{1024 * i}")
    a("s_waitcnt vmcnt(0) lgkmcnt(0)\ns_barrier")
    R0 = 136
    for c in range(2):
        for rh in range(2):
            for hf in range(2): a(f"ds_read_b128 {v(R0 + 16 * c + 8 * rh + 4 * hf, 4)}, {v(3 + hf)} offset:{RB + 8192 * (2 * c + rh)}")
    YS = 48
    for c in range(2):
        a("s_waitcnt lgkmcnt(%d)" % (4 - 4 * c))
        for i in range(8): a(f"v_add_f32 {v(R0 + 16 * c + i)}, {v(R0 + 16 * c + i)}, {v(R0 + 16 * c + 8 + i)}")
        for i in range(4): a(f"v_cvt_pk_bf16_f32 {v(YS + 4 * c + i)}, {v(R0 + 16 * c + 2 * i)}, {v(R0 + 16 * c + 2 * i + 1)}")
        a(f"buffer_store_dwordx4 {v(YS + 4 * c, 4)}, {v(vUL)}, {s(SO, 4)}, 0 offen offset:{2048 * c}")
    stamp(7)
    QP = 100
    for jj in range(8): a(f"ds_read_b32 {v(VR + jj)}, {v(vA0)} offset:{QT + jj * 128}")
    a(f"""v_lshrrev_b32 v5, 3, v0
    v_and_b32 v6, 7, v0
    v_xor_b32 v6, {s(sWV)}, v6
    v_lshlrev_b32 v6, 4, v6
    v_lshl_add_u32 v5, v5, 11, v6
    s_lshl_b32 {s(T1)}, {s(sJ)}, 17
    s_lshl_b32 {s(T2)}, {s(sG)}, 7
    s_add_u32 {s(T1)}, {s(T1)}, {s(T2)}
    v_add_u32 v5, {s(T1)}, v5
    v_xor_b32 v6, 64, v5
    v_add_u32 v6, 65536, v6""")
    publish()
    stamp(8)
    a("s_waitcnt lgkmcnt(0)")
    for jj in range(8): unpack(QP + 2 * jj, VR + jj)
    for t in range(16): a(f"v_mul_f32 {v(UD + t)}, {v(UD + t)}, {v(QP + t)}")
    g.poll_group("L_a_poll3", 2, vPF, 12, SWS, sTAGX, sTAG, sCNT, sTMO, sME, sMASK, cfg.aslp)
    stamp(9)
    YT, YP = 136, 144
    for c in range(2): a(f"buffer_load_dwordx4 {v(YT + 4 * c, 4)}, {v(vUS)}, {s(SO, 4)}, 0 offen offset:{2048 * c} sc1")
    for c in range(2):
        a(f"s_waitcnt vmcnt({1 - c})")
        for e in range(4):
            a(f"v_lshlrev_b32 {v(YP + 4 * e + c)}, 16, {v(YT + 4 * c + e)}\nv_and_b32 {v(YP + 4 * e + 2 + c)}, 0xffff0000, {v(YT + 4 * c + e)}")
    for t in range(8):
        for c in range(2): a(f"v_fmac_f32 {v(UD + 2 * t + c)}, {v(YP + 2 * t + c)}, {v(QP + 2 * t + c)}")
        a(f"v_cvt_pk_bf16_f32 {v(YT + t)}, {v(UD + 2 * t)}, {v(UD + 2 * t + 1)}\nds_write_b32 {v(vA0)}, {v(YT + t)} offset:{OT + 128 * t}")
    a("s_waitcnt lgkmcnt(0)\ns_barrier")
    stamp(10)
    for e in range(2): a(f"ds_read_b128 {v(YP + 4 * e, 4)}, v2 offset:{OT + 4096 * e}")
    for e in range(2): a(f"s_waitcnt lgkmcnt({1 - e})\nbuffer_store_dwordx4 {v(YP + 4 * e, 4)}, {v(5 + e)}, {s(SO, 4)}, 0 offen{cfg.aosc}")
    a(f"""s_or_b32 {s(T0)}, {s(sJ)}, {s(sWV)}
    s_cbranch_scc1 L_a_noepoch
    s_lshl2_add_u32 {s(T0)}, {s(sG)}, {EPA}
    v_mov_b32 v12, {s(T0)}
    v_mov_b32 v13, {s(sTAG)}
    s_mov_b64 exec, 1
    buffer_store_dword v13, v12, {s(SWS, 4)}, 0 offen
    s_mov_b64 exec, -1""")
    a.label("L_a_noepoch")
    g.stamp_flush(SWS, sWV)

def gen(cfg):
    g = G(cfg); a = g.a
    if cfg.pref == 2:
        a("""s_cmp_ge_u32 s2, 32
        s_cbranch_scc1 L_nopf
        s_getpc_b64 s[60:61]
        L_pc:
        s_lshr_b32 s3, s2, 3
        v_and_b32 v1, 0xcf, v0
        v_lshl_add_u32 v1, s3, 4, v1
        v_lshlrev_b32 v1, 7, v1
        v_min_u32 v1, L_hot_end-L_pc-4, v1
        s_mov_b64 exec, 0xffff
        global_load_dword v110, v1, s[60:61]
        s_mov_b64 exec, -1
        L_nopf:""")
    if cfg.afirst:
        a("s_cmp_ge_u32 s2, 512\ns_cbranch_scc1 L_end")
        if cfg.afirst == 2: a("s_xor_b32 s2, s2, 256")
        a("s_cmp_lt_u32 s2, 256\ns_cbranch_scc1 L_B")
        progA0(g)
        a.label("L_B")
    else: a("s_cmp_ge_u32 s2, 256\ns_cbranch_scc1 L_A")
    if cfg.only == "A": a("s_branch L_end")
    progB(g)
    progA(g)
    a.label("L_end")
    a("s_endpgm")
    g.flush_tails()
    a.lines += g.cold
    i = a.lines.index("L_b_slow:")
    j = a.lines.index("s_branch L_b_att_done", i)
    slowp = a.lines[i:j + 1]; del a.lines[i:j + 1]
    a.label("L_hot_end")
    a.lines += slowp
    return a

HERE = os.path.dirname(os.path.abspath(__file__))
HDR = open(os.path.join(HERE, "..", "cdna_kernels", NAME + ".s.ref")).read()
def full(cfg):
    a = gen(cfg)
    errs = check(a.lines)
    for e in errs: print(e, file=sys.stderr)
    out = HDR[:HDR.index("; Override launch")] + "; @launch grid=(512,1,1) block=(256,1,1) lds=81920\n"
    out += '.amdgcn_target "amdgcn-amd-amdhsa--gfx950"\n.text\n.globl %s_kernel\n.p2align 8\n.type %s_kernel,@function\n%s_kernel:\n' % (NAME, NAME, NAME)
    out += a.text() + HDR[HDR.index('.section .rodata'):]
    return out, errs

if __name__ == "__main__":
    cfg = Cfg()
    for x in sys.argv[2:]:
        k, val = x.split("=")
        assert hasattr(cfg, k), k
        setattr(cfg, k, eval(val))
    txt, errs = full(cfg)
    open(sys.argv[1], "w").write(txt)
    print("wrote", sys.argv[1], len(txt), "bytes;", len(errs), "hazards")
```

```python
import sys, os
sys.path.insert(0, os.path.dirname(os.path.abspath(__file__)))
from asmlib import Asm, v, s, check

NAME = "concat_heads__ssm_conv_h3__sliding_block__prompt"
MB = 1 << 20
KV_OFF = 0x10000
O_OFF = 5 * MB
FL = 7 * MB
EPA, EPB = FL, FL + 128
F1, F3, F4 = FL + 0x1000, FL + 0x2000, FL + 0x3000
GOFF = 0x3000
F2, F5 = FL + 0x8000, FL + 0x18000
F6 = FL + 0x14000
E2, E4, F4W = FL + 0x400, FL + 0xC00, FL + 0x20000
ST_OFF = 7 * MB + MB // 2
U_OFF, Y_OFF = 10 * MB, 12 * MB
WS_SIZE = 16 * MB
TAGINC = 0x9E377900
SPIN = 200000
MF32 = "v_mfma_f32_32x32x16_bf16"
MF16 = "v_mfma_f32_16x16x32_bf16"

class Cfg:
    stamps = False
    only = None
    rot = 6
    fast = True
    tmo = 96
    slp = 1
    prio = 2
    aprio = 1
    cprio = 0
    pref = 2
    dbg = False
    b3pre = 4
    c3touch = 1
    trig = 0
    hsched = (2, 5, 8)
    wsched = (4, 10, 12, 14)
    tsched = 6
    tlb = 0
    qall = 1
    p2at = 31
    stat = (1, 2, 3, 4)
    pubat = 20
    f2t = 1
    f2own = 0
    hearly = 0
    h7first = 1
    wqt = 0
    wot = -1
    wbl = 0
    lean = 1
    awt = 0
    qlatew = 1
    tprio = -1
    oin = 1
    n12 = (4, 10)
    cqx = 4
    wota = 0
    wotm = "0xf"
    cut = 0
    aosc = ""
    bosc = ""
    map = 1
    h4g = 0
    afirst = 0
    usc1 = 1
    aslp = 8
    a0prio = 3
    hlate = 0
    qat = 3

class G:
    def __init__(self, cfg):
        self.cfg = cfg; self.a = Asm(); self.nst = 0; self.tails = []; self.cold = []
    def stamp(self, i):
        if self.cfg.stamps: self.a("%s %s" % ("s_memtime" if self.cfg.stamps == 2 else "s_memrealtime", s(64 + 2 * i, 2)))
    def stamp_flush(self, wsrd, wv):
        a = self.a
        if not self.cfg.stamps: return
        lab = "L_nost%d" % self.nst; self.nst += 1
        a("s_waitcnt vmcnt(0)"); self.stamp(11)
        a(f"s_cmp_lg_u32 {s(wv)}, 0\ns_cbranch_scc1 {lab}\ns_waitcnt lgkmcnt(0)\ns_lshl_b32 s60, s2, 7\ns_add_u32 s60, s60, {ST_OFF}\nv_mov_b32 v0, 0")
        for i in range(16):
            a(f"v_mov_b32 v2, {s(64 + 2 * i)}\nv_mov_b32 v3, {s(65 + 2 * i)}\nbuffer_store_dwordx2 v[2:3], v0, {s(wsrd, 4)}, s60 offen offset:{8 * i}")
        a.label(lab)
    def srd(self, base, size): self.a(f"s_mov_b32 {s(base + 2)}, {size}\ns_mov_b32 {s(base + 3)}, 0x20000")
    def mark(self, vt, i):
        if self.cfg.dbg:
            self.a(f"s_load_dwordx2 s[96:97], s[0:1], 80\ns_waitcnt lgkmcnt(0)\nv_mov_b32 {v(vt)}, {4 * i}\nv_mov_b32 {v(vt + 1)}, 1\n"
                   f"s_mov_b64 exec, 1\nglobal_atomic_add {v(vt)}, {v(vt + 1)}, s[96:97] sc1\ns_mov_b64 exec, -1")
    def flush_tails(self):
        keep = self.a.lines; self.a.lines = []
        for f in self.tails: f()
        self.cold += self.a.lines; self.a.lines = keep; self.tails = []
    def poll_group(self, lab, w, vaddr, vt, wsrd, stagx, stag, scnt, stmo, sme, sp, slp=None, glob=False):
        a = self.a; cfg = self.cfg
        ld = "buffer_load_dword" + ("x2" if w == 2 else "")
        slp = cfg.slp if slp is None else slp
        if glob: stagx = stag
        a(f"s_mov_b32 {s(scnt)}, {SPIN if glob else s(stmo)}")
        a.label(lab)
        a(f"{ld} {v(vt, w)}, {v(vaddr)}, {s(wsrd, 4)}, 0 offen sc1\ns_waitcnt vmcnt(0)")
        a(f"v_cmp_ne_u32 vcc, {s(stagx)}, {v(vt)}")
        if w == 2: a(f"v_cmp_ne_u32 {s(sp, 2)}, {s(stagx)}, {v(vt + 1)}\ns_sub_u32 {s(scnt)}, {s(scnt)}, 1\ns_or_b64 vcc, vcc, {s(sp, 2)}")
        else: a(f"s_sub_u32 {s(scnt)}, {s(scnt)}, 1\ns_cmp_lg_u64 vcc, 0")
        a(f"s_cbranch_scc0 {lab}_x")
        if slp: a(f"s_sleep {slp}")
        a(f"s_cmp_gt_i32 {s(scnt)}, 0\ns_cbranch_scc1 {lab}")
        if glob:
            self.mark(vt, 0); a.label(lab + "_x"); return
        a(f"s_branch {lab}_r")
        a.label(lab + "_x")
        def tail():
            a.label(lab + "_r")
            self.mark(vt, 2)
            a(f"buffer_wbl2 sc1\ns_waitcnt vmcnt(0)\nv_mov_b32 {v(vt)}, {s(sme)}\nv_mov_b32 {v(vt + 1)}, {s(stag)}\ns_mov_b32 {s(scnt)}, {GOFF}")
            a(f"s_mov_b64 exec, 1\nbuffer_store_dword {v(vt + 1)}, {v(vt)}, {s(wsrd, 4)}, {s(scnt)} offen sc1\ns_mov_b64 exec, -1\ns_mov_b32 {s(stmo)}, {SPIN}")
            a.label(lab + "_gl")
            a(f"{ld} {v(vt, w)}, {v(vaddr)}, {s(wsrd, 4)}, 0 offen sc1\n{ld} {v(vt + 2, w)}, {v(vaddr)}, {s(wsrd, 4)}, {s(scnt)} offen sc1\ns_waitcnt vmcnt(0)")
            a(f"v_cmp_ne_u32 vcc, {s(stagx)}, {v(vt)}\nv_cmp_ne_u32 {s(sp, 2)}, {s(stag)}, {v(vt + 2)}\ns_sub_u32 {s(stmo)}, {s(stmo)}, 1\ns_and_b64 vcc, vcc, {s(sp, 2)}")
            if w == 2:
                a(f"s_cbranch_scc1 {lab}_gr")
                a(f"v_cmp_ne_u32 vcc, {s(stagx)}, {v(vt + 1)}\nv_cmp_ne_u32 {s(sp, 2)}, {s(stag)}, {v(vt + 3)}\ns_nop 0\ns_and_b64 vcc, vcc, {s(sp, 2)}")
            a(f"s_cbranch_scc0 {lab}_gx")
            a.label(lab + "_gr")
            a(f"s_sleep 2\ns_cmp_lg_u32 {s(stmo)}, 0\ns_cbranch_scc1 {lab}_gl")
            self.mark(vt, 1)
            a.label(lab + "_gx")
            a(f"s_mov_b32 {s(stmo)}, 0\nbuffer_inv sc1\ns_waitcnt vmcnt(0)\ns_branch {lab}_x")
        self.tails.append(tail)

def mf(d, x, y, c): return f"{MF32} {v(d, 16)}, {v(x, 4)}, {v(y, 4)}, {'0' if c is None else v(c, 16)}"

def progB(g):
    a, cfg, stamp = g.a, g.cfg, g.stamp
    SX, SW, SWO, SOUT, SWS = 4, 8, 12, 16, 20
    sG, sJ, sRB, sHQ, sWV, sKX, sKW = 24, 25, 26, 27, 28, 29, 34
    T0, T1, T2, T3 = 30, 31, 32, 33
    sM0X, sM0W, sCNT, sQ = 35, 36, 37, 40
    sMASK = 38
    sEP0, sEP1 = 41, 42
    sTAG, sNB, sOS, sTAGX, sTMO, sME, sHB, sWL, sWG, sF4 = 43, 44, 45, 46, 47, 50, 51, 52, 53, 54
    sEXV, sONE = 48, 56
    sRB3, sCQ, sTAG4 = (62, 63, 55) if cfg.map == 0 else (sRB, 63 if cfg.cqx else sHQ, 55)
    assert cfg.map == 1 or cfg.h4g
    XF, WF, AK, AV, AQ = 0, 128, 160, 176, 192
    vX0, vX1, vW0, vW1, vQ0, vWR, vWQ, vWQ2 = 208, 209, 210, 211, 212, 213, 214, 215
    vXR = 216
    vT = 100
    vVS, vKL, vVL, vFA = 220, 221, 222, 223
    vL16, vL, vVP, vFV = 240, 241, 242, 243
    vWO = 244
    vP2, vP4, vM, vB2, vA, vNEG, vZ, vMK = 248, 249, 250, 251, 252, 253, 254, 255
    VF, KF, QF = 0, 80, 120
    S0, S1, PB, MBK, OA, NM, MD = 128, 144, 160, 168, 192, 208, 224
    assert cfg.qall and cfg.map == 1 and not cfg.h4g and not cfg.trig
    SLOT = 24576
    vm = []
    def wait_vm(tag): a("s_waitcnt vmcnt(%d)" % (len(vm) - 1 - vm.index(tag)))
    def vmem(text, tag): a(text); vm.append(tag)

    if cfg.map == 1:
        ids = f"""s_lshr_b32 {s(T0)}, s2, 6
        s_bfe_u32 {s(sHQ)}, s2, 0x30003
        s_lshl2_add_u32 {s(sRB)}, {s(sG)}, {s(T0)}"""
    else:
        ids = f"""s_lshr_b32 {s(T0)}, s2, 5
        s_bfe_u32 {s(sKX)}, s2, 0x20003
        s_and_b32 {s(sKW)}, s2, 1
        s_bfe_u32 {s(sRB)}, s2, 0x20001
        s_lshl2_add_u32 {s(sHQ)}, {s(sKW)}, {s(sKX)}
        s_lshl3_add_u32 {s(sRB)}, {s(sRB)}, {s(T0)}"""
    stamp(0)
    a(f"""s_load_dwordx2 {s(SX, 2)}, s[0:1], 48
    s_load_dwordx2 {s(SW, 2)}, s[0:1], 56
    v_lshrrev_b32 v1, 6, v0
    v_lshrrev_b32 v2, 3, v0
    s_and_b32 {s(sG)}, s2, 7
    v_readfirstlane_b32 {s(sWV)}, v1
    {ids}
    v_lshl_add_u32 v1, v1, 3, v2
    v_and_b32 v2, 7, v0
    v_bfe_u32 v3, v0, 4, 2
    v_xor_b32 v4, v2, v3
    s_lshl_b32 {s(T1)}, {s(sRB)}, 16
    v_lshlrev_b32 v4, 4, v4
    v_lshl_add_u32 v4, v1, 10, v4
    v_add_u32 {v(vX0)}, {s(T1)}, v4
    v_and_b32 v3, 1, v3
    v_xor_b32 v4, 64, {v(vX0)}
    v_lshlrev_b32 v3, 2, v3
    v_add_u32 {v(vX1)}, {8192 - 1024}, v4
    v_xor_b32 v3, v3, v2
    s_lshl_b32 {s(T2)}, {s(sHQ)}, 7
    v_lshl_add_u32 v3, v3, 4, {s(T2)}
    s_movk_i32 {s(T3)}, 3072
    v_mad_u32_u24 {v(vQ0)}, v1, {s(T3)}, v3""")
    if cfg.map == 0:
        a(f"s_lshl1_add_u32 {s(sKX)}, {s(sKX)}, {s(sKW)}")
        if cfg.rot == 1: a(f"s_add_u32 {s(sKX)}, {s(sKX)}, {s(T0)}")
        elif cfg.rot == 2: a(f"s_and_b32 {s(sKW)}, {s(T0)}, 6\ns_add_u32 {s(sKX)}, {s(sKX)}, {s(sKW)}")
        elif cfg.rot == 3: a(f"s_and_b32 {s(sKW)}, {s(T0)}, 4\ns_add_u32 {s(sKX)}, {s(sKX)}, {s(sKW)}\ns_bfe_u32 {s(sKW)}, s2, 0x20001\ns_add_u32 {s(sKX)}, {s(sKX)}, {s(sKW)}")
        elif cfg.rot == 6: a(f"s_and_b32 {s(sKW)}, s2, 6\ns_add_u32 {s(sKX)}, {s(sKX)}, {s(sKW)}")
    elif cfg.rot == 1: a(f"s_lshl1_add_u32 {s(sKX)}, {s(T0)}, {s(sHQ)}")
    elif cfg.rot == 4: a(f"s_mov_b32 {s(sKX)}, {s(sG)}")
    elif cfg.rot == 6: a(f"s_add_u32 {s(sKX)}, {s(sG)}, {s(sHQ)}")
    elif cfg.rot == 7: a(f"s_and_b32 {s(sKX)}, {s(T0)}, 2\ns_lshl1_add_u32 {s(sKX)}, {s(sKX)}, {s(sHQ)}\ns_add_u32 {s(sKX)}, {s(sKX)}, {s(sG)}")
    elif cfg.rot == 8: a(f"s_lshl1_add_u32 {s(sKX)}, {s(T0)}, {s(sHQ)}\ns_add_u32 {s(sKX)}, {s(sKX)}, {s(sG)}")
    else: a(f"s_mov_b32 {s(sKX)}, 0")
    a(f"""v_add_u32 {v(vW0)}, 1024, {v(vQ0)}
    s_lshl_b32 {s(sKX)}, {s(sKX)}, 7
    v_add_u32 {v(vW1)}, {24576 - 1024}, {v(vQ0)}
    s_lshl_b32 {s(sM0X)}, {s(sWV)}, 11
    s_lshl_b32 {s(sM0W)}, {s(sWV)}, 12""")
    g.srd(SX, 2 * MB); g.srd(SW, 3 * MB // 2)
    L = "buffer_load_dwordx4 %s, %s, %s offen%s lds"
    def dma_kv(st):
        base = (st % 3) * SLOT
        def mk(pre, text, i): return lambda: (a(pre) if pre else None, vmem(text, ("d", st, i)))
        return [mk(f"s_and_b32 {s(sKX)}, {s(sKX)}, 0x380\ns_add_u32 m0, {s(sM0X)}, {base}\ns_mul_i32 {s(sKW)}, {s(sKX)}, 1536", L % (v(vX0), s(SX, 4), s(sKX), ""), 0),
                mk("", L % (v(vX1), s(SX, 4), s(sKX), " offset:1024"), 1),
                mk(f"s_add_u32 m0, {s(sM0W)}, {base + 8192}\ns_addk_i32 {s(sKX)}, 128", L % (v(vW0), s(SW, 4), s(sKW), ""), 2),
                mk("", L % (v(vW0), s(SW, 4), s(sKW), " offset:1024"), 3),
                mk("", L % (v(vW1), s(SW, 4), s(sKW), " offset:2048"), 4),
                mk("", L % (v(vW1), s(SW, 4), s(sKW), " offset:3072"), 5)]
    QCH = {8: [0, 1, 2], 9: [3, 4, 5], 10: [6, 7]}
    def dma_q(st):
        base = (st % 3) * SLOT
        out = []
        def mk(pre, text, i): return lambda: (a(pre) if pre else None, vmem(text, ("d", st, i)))
        for n, c in enumerate(QCH[st]):
            out.append(mk(f"s_and_b32 {s(sKX)}, {s(sKX)}, 0x380\ns_add_u32 m0, {s(sM0X)}, {base + n * 8192}\ns_mul_i32 {s(sKW)}, {s(sKX)}, 1536", L % (v(vQ0), s(SW, 4), s(sKW), ""), 2 * n))
            out.append(mk(f"s_addk_i32 {s(sKX)}, 128", L % (v(vW1), s(SW, 4), s(sKW), " offset:1024"), 2 * n + 1))
        return out
    def dma(st): return dma_kv(st) if st < 8 else dma_q(st)
    def last(st): return ("d", st, 5 if st < 10 else 3)
    def run(fs):
        for f in fs: f()
    if cfg.c3touch >= 2:
        a(f"""s_lshr_b32 {s(T1)}, s2, 3
        v_and_b32 v5, 63, v0
        s_lshl2_add_u32 {s(T1)}, {s(T1)}, {s(sWV)}
        v_lshlrev_b32 v5, 10, v5
        s_mul_i32 {s(T1)}, {s(T1)}, {4 * 3072}""")
    def c3():
        a("s_mov_b64 exec, 0xfff")
        vmem(f"buffer_load_dword {v(vT)}, v5, {s(SW, 4)}, {s(T1)} offen offset:384", ("t", 0))
        a("s_mov_b64 exec, -1")
    a("s_waitcnt lgkmcnt(0)")
    if cfg.c3touch == 2: c3()
    run(dma(0))
    if cfg.c3touch == 3: c3()
    run(dma(1))
    if not cfg.afirst:
        a("s_branch L_B2")
        progA0(g)
        a.label("L_B2")
    a(f"""s_load_dwordx2 {s(SWS, 2)}, s[0:1], 88
    s_load_dwordx2 {s(SWO, 2)}, s[0:1], 64
    s_load_dwordx2 {s(SOUT, 2)}, s[0:1], 72
    v_and_b32 {v(vL)}, 63, v0
    s_lshr_b32 {s(sJ)}, s2, 3""")
    if cfg.prio: a(f"s_setprio {cfg.prio}")
    if cfg.c3touch == 1:
        a(f"""v_and_b32 v7, 3, v0
        v_bfe_u32 v6, v0, 2, 2
        v_mul_u32_u24 v5, 3072, v7
        s_lshl2_add_u32 {s(T1)}, {s(sJ)}, {s(sWV)}
        v_lshl_add_u32 v5, v6, 10, v5
        s_mul_i32 {s(T2)}, {s(T1)}, {4 * 3072}
        s_add_u32 {s(T2)}, {s(T2)}, 384
        v_add_u32 v5, {s(T2)}, v5""")
        if cfg.wqt:
            a(f"""s_lshl_b32 {s(T3)}, {s(sG)}, 7
            s_sub_u32 {s(T3)}, {s(T3)}, {3072 + 384}
            s_mov_b64 exec, 0xf000
            v_add_u32 v5, {s(T3)}, v5""")
        a("s_mov_b64 exec, %s" % ("0xffff" if cfg.wqt else "0xfff"))
        vmem(f"buffer_load_dword {v(vT)}, v5, {s(SW, 4)}, 0 offen", ("t", 0))
        a("s_mov_b64 exec, -1")
    if cfg.wot != -1:
        a(f"""s_lshl2_add_u32 {s(T1)}, {s(sJ)}, {s(sWV)}
        s_lshl_b32 {s(T1)}, {s(T1)}, 12
        v_and_b32 v7, 3, v0
        v_lshl_add_u32 {v(vZ)}, v7, 10, {s(T1)}
        s_lshl_b32 {s(T3)}, {s(sG)}, 7
        s_mov_b64 exec, 0xf
        v_add_u32 {v(vZ)}, 384, {v(vZ)}
        s_mov_b64 exec, 0xf0
        v_add_u32 {v(vZ)}, {s(T3)}, {v(vZ)}
        s_mov_b64 exec, -1""")
    def wotouch(dst):
        a("s_mov_b64 exec, 0xff")
        vmem(f"buffer_load_dword {v(dst)}, {v(vZ)}, {s(SWO, 4)}, 0 offen", ("wot",))
        a("s_mov_b64 exec, -1")
    if cfg.pref == 1:
        a(f"""s_getpc_b64 s[60:61]
        L_pc:
        s_lshl2_add_u32 {s(T1)}, {s(sJ)}, {s(sWV)}
        s_lshl_b32 {s(T1)}, {s(T1)}, 8
        v_lshl_add_u32 v5, {v(vL)}, 7, {s(T1)}
        v_min_u32 v5, L_hot_end-L_pc-4, v5
        s_mov_b64 exec, 3""")
        vmem(f"global_load_dword {v(vT + 1)}, v5, s[60:61]", ("t", 1))
        a("s_mov_b64 exec, -1")
    g.srd(SWO, MB // 2); g.srd(SOUT, 4 * MB); g.srd(SWS, WS_SIZE)
    if cfg.map == 0:
        a(f"""s_lshr_b32 {s(T0)}, s2, 6
        s_and_b32 {s(sCQ)}, {s(sJ)}, 7
        s_lshl2_add_u32 {s(sRB3)}, {s(sG)}, {s(T0)}
        s_lshl_b32 {s(T0)}, {s(sCQ)}, 7
        v_and_b32 v3, 0x7f, v3
        v_add_u32 v3, {s(T0)}, v3""")
    if cfg.cqx: a(f"s_xor_b32 {s(sCQ)}, {s(sHQ)}, {cfg.cqx}\nv_xor_b32 v3, {128 * cfg.cqx}, v3")
    a(f"""v_bfe_u32 v5, v0, 3, 3
    v_lshl_add_u32 {v(vWO)}, v5, 10, v3""")
    for n in range(1, 4): a(f"v_add_u32 {v(vWO + n)}, {7168 * n}, {v(vWO)}")
    a(f"""v_lshlrev_b32 {v(vL16)}, 4, {v(vL)}
    s_and_b32 {s(T0)}, {s(sWV)}, 1
    s_lshr_b32 {s(T1)}, {s(sWV)}, 1
    v_and_b32 v1, 31, v0
    v_bfe_u32 v2, v0, 5, 1
    v_bfe_u32 v3, v0, 1, 3
    s_lshl_b32 {s(T2)}, {s(T0)}, 12
    v_lshl_add_u32 v1, v1, 7, {s(T2)}""")
    for ks in range(4):
        a(f"v_add_u32 v4, {2 * ks}, v2\nv_xor_b32 v4, v4, v3\nv_lshl_add_u32 {v(vXR + ks)}, v4, 4, v1")
    XK, XV, XQ = 73728, 40960, 49152
    a(f"""v_bfe_u32 v4, v0, 2, 2
    v_bfe_u32 v5, v0, 3, 1
    v_xor_b32 v5, {s(T1)}, v5
    v_lshlrev_b32 v5, 6, v5
    v_lshl_add_u32 v5, v4, 7, v5
    v_bfe_u32 v6, v0, 4, 1
    v_lshl_add_u32 v5, v6, 5, v5
    v_and_b32 v7, 3, v0
    v_lshl_add_u32 v5, v7, 3, v5
    v_lshl_add_u32 {v(vWR)}, v2, 11, v5
    v_lshl_add_u32 {v(vWQ)}, v2, 10, v5
    v_add_u32 {v(vWR)}, 8192, {v(vWR)}
    v_add_u32 {v(vWQ2)}, 49152, {v(vWQ)}
    v_and_b32 v8, 15, v0
    v_lshlrev_b32 v8, 4, v8
    v_lshl_add_u32 {v(vVP)}, v2, 8, v8
    v_lshl_add_u32 {v(vVS)}, v6, 17, {v(vVP)}
    s_lshl_b32 {s(T2)}, {s(T1)}, 12
    s_lshl_b32 {s(T3)}, {s(T0)}, 10
    s_add_u32 {s(T2)}, {s(T2)}, {s(T3)}
    v_lshl_add_u32 {v(vVL)}, v6, 11, {v(vVP)}
    v_add_u32 {v(vVL)}, {s(T2)}, {v(vVL)}
    s_add_u32 {s(T2)}, {s(T2)}, {XK - 16384}
    v_add_u32 {v(vKL)}, {s(T2)}, {v(vL16)}""")
    sKS, sKS1 = 58, 59
    if cfg.oin:
        obase = f"""s_lshl3_add_u32 {s(sOS)}, {s(sRB)}, {s(sWV)}
        s_lshl_b32 {s(sOS)}, {s(sOS)}, 14
        s_lshl_b32 {s(T1)}, {s(sCQ)}, 7
        s_add_u32 {s(sOS)}, {s(sOS)}, {s(T1)}
        s_add_u32 {s(sOS)}, {s(sOS)}, 1024"""
    else:
        obase = f"""s_lshl_b32 {s(sOS)}, {s(sRB)}, 16
        s_lshl_b32 {s(T1)}, {s(T0)}, 10
        s_add_u32 {s(sOS)}, {s(sOS)}, {s(T1)}
        s_add_u32 {s(sOS)}, {s(sOS)}, {O_OFF}"""
    SO_ = SOUT if cfg.oin else SWS
    vOL = 184 if cfg.oin else vL16
    a(f"""s_lshl1_add_u32 {s(T2)}, {s(sHQ)}, {s(T1)}
    s_lshl_b32 {s(T2)}, {s(T2)}, 18
    s_lshl1_add_u32 {s(T3)}, {s(sRB)}, {s(T0)}
    s_lshl_b32 {s(T3)}, {s(T3)}, 11
    s_add_u32 {s(T2)}, {s(T2)}, {s(T3)}
    s_add_u32 {s(sKS)}, {s(T2)}, {KV_OFF}
    s_add_u32 {s(sKS1)}, {s(T2)}, {KV_OFF + 131072}
    s_lshl2_add_u32 {s(T0)}, {s(sHQ)}, {s(sWV)}
    {obase}
    s_lshl_b32 {s(sHB)}, {s(T0)}, 17
    s_lshl_b32 {s(T1)}, {s(sRB)}, 12
    s_add_u32 {s(sHB)}, {s(sHB)}, {s(T1)}
    s_add_u32 {s(sHB)}, {s(sHB)}, {KV_OFF - 4096}
    s_lshl_b32 {s(sF4)}, {s(sRB)}, 7
    s_add_u32 {s(sF4)}, {s(sF4)}, {F4}
    s_lshl2_add_u32 {s(sME)}, {s(T0)}, {s(sF4)}
    v_and_b32 v1, 31, v0
    v_lshl_add_u32 {v(vP4)}, v1, 2, {s(sF4)}
    s_lshl3_add_u32 {s(T1)}, {s(sRB)}, {s(sHQ)}
    s_lshl_b32 {s(T1)}, {s(T1)}, 7
    s_add_u32 {s(T1)}, {s(T1)}, {F2}
    v_lshl_add_u32 {v(vP2)}, v7, 2, {s(T1)}
    s_mul_i32 {s(T2)}, {s(sWV)}, 1028
    s_add_u32 {s(T2)}, {s(T2)}, {s(T1)}
    s_add_u32 {s(T2)}, {s(T2)}, 1024
    v_mov_b32 {v(vFA)}, {s(T2)}
    s_lshl_b32 {s(sWL)}, {s(sWV)}, 14
    s_lshl_b32 {s(sWG)}, {s(sWV)}, 17
    s_min_u32 {s(sNB)}, {s(sRB)}, 4
    s_getreg_b32 {s(sTAGX)}, hwreg(HW_REG_XCC_ID, 0, 4)
    s_mov_b32 {s(sTMO)}, {cfg.tmo}
    s_mov_b32 {s(sONE)}, 0x3f803f80
    s_mov_b32 {s(sONE + 1)}, 0x3f803f80
    s_mov_b32 {s(sEXV)}, 0xffff
    s_mov_b32 {s(sEXV + 1)}, 0xffff
""")
    vE4, vF4 = 254, 248
    if not cfg.h4g:
        a(f"""s_lshl2_add_u32 {s(T0)}, {s(sRB)}, {EPB}
        s_lshl2_add_u32 {s(T1)}, {s(sWV)}, {s(T0)}
        s_waitcnt lgkmcnt(0)
        s_load_dword {s(sEP0)}, {s(SWS, 2)}, {s(T0)}
        s_load_dword {s(sEP1)}, {s(SWS, 2)}, {s(T1)} offset:4""")
        vmem(f"buffer_load_dword {v(vT + 2)}, {v(vP4)}, {s(SWS, 4)}, 0 offen sc1", ("t", 2))
    else:
        a(f"""s_lshl2_add_u32 {s(T2)}, {s(sHQ)}, {s(sWV)}
        s_lshl_b32 {s(T3)}, {s(sRB)}, 5
        s_add_u32 {s(T2)}, {s(T2)}, {s(T3)}
        s_lshl_b32 {s(T2)}, {s(T2)}, 7
        s_add_u32 {s(T2)}, {s(T2)}, {F4W}
        v_and_b32 v1, 7, v0
        v_lshl_add_u32 {v(vF4)}, v1, 2, {s(T2)}
        s_add_u32 {s(T3)}, {s(T3)}, {E4}
        v_lshl_add_u32 v1, v1, 2, {s(T3)}
        s_lshr_b32 {s(T2)}, {s(sWV)}, 1
        s_lshl1_add_u32 {s(T2)}, {s(sRB3)}, {s(T2)}
        s_lshl_b32 {s(T2)}, {s(T2)}, 11
        s_lshl2_add_u32 {s(T2)}, {s(sCQ)}, {s(T2)}
        s_add_u32 {s(T2)}, {s(T2)}, {F4W}
        v_and_b32 v2, 15, v0
        v_lshl_add_u32 {v(vP4)}, v2, 7, {s(T2)}
        s_lshl_b32 {s(T0)}, {s(sHQ)}, 6
        s_add_u32 {s(T0)}, {s(T0)}, {s(sRB)}
        s_lshl2_add_u32 {s(sF4)}, {s(T0)}, {E2}
        s_lshl2_add_u32 {s(T1)}, {s(sWV)}, {s(sF4)}
        s_lshl3_add_u32 {s(T2)}, {s(sRB3)}, {s(sCQ)}
        s_lshl2_add_u32 {s(sME)}, {s(T2)}, {E4}
        s_waitcnt lgkmcnt(0)
        s_load_dword {s(sEP0)}, {s(SWS, 2)}, {s(sF4)}
        s_load_dword {s(sEP1)}, {s(SWS, 2)}, {s(T1)} offset:4
        s_load_dword {s(sTAG4)}, {s(SWS, 2)}, {s(sME)}""")
        vmem(f"buffer_load_dword {v(vE4)}, v1, {s(SWS, 4)}, 0 offen", ("t", 2))
    if cfg.oin:
        a(f"s_mov_b32 {s(T2)}, {F6 - F4}")
        vmem(f"buffer_load_dword {v(vT + 8)}, {v(vP4)}, {s(SWS, 4)}, {s(T2)} offen sc1", ("t", 8))
    if cfg.wot == -2: wotouch(vT + 7)
    if cfg.f2own:
        a(f"""s_lshl3_add_u32 {s(T1)}, {s(sRB)}, {s(sHQ)}
        s_lshl_b32 {s(T1)}, {s(T1)}, 9
        s_add_u32 {s(T1)}, {s(T1)}, {F4W + 0x8000}
        s_lshl_b32 {s(T2)}, {s(sWV)}, 7
        s_add_u32 {s(T2)}, {s(T2)}, {s(T1)}
        v_mov_b32 {v(vFA)}, {s(T2)}
        s_sub_u32 {s(T1)}, {s(T1)}, 4096
        v_mul_u32_u24 v1, {4096 - 128}, v7
        v_sub_u32 {v(vP2)}, {s(T1)}, v1""")
    if cfg.f2t:
        vmem(f"buffer_load_dword {v(vT + 6)}, {v(vP2 if cfg.f2t == 1 else vFA)}, {s(SWS, 4)}, 0 offen sc1", ("t", 6))
    if cfg.tlb:
        a(f"""v_mov_b32 v1, {s(sKS)}
        v_writelane_b32 v1, {s(sOS)}, 1
        s_lshl_b32 {s(T0)}, {s(sRB)}, 17
        v_mov_b32 v2, 0
        s_mov_b64 exec, 3""")
        vmem(f"buffer_load_dword {v(vT + 3)}, v1, {s(SWS, 4)}, 0 offen sc1", ("t", 3))
        a("s_mov_b64 exec, 1")
        vmem(f"buffer_load_dword {v(vT + 4)}, v2, {s(SWO, 4)}, 0 offen", ("t", 4))
        vmem(f"buffer_load_dword {v(vT + 5)}, v2, {s(SOUT, 4)}, {s(T0)} offen offset:1024 sc1", ("t", 5))
        a("s_mov_b64 exec, -1")

    a.c("diagonal mask and later addresses, built while the first tiles are in flight")
    a(f"""v_and_b32 {v(vMK)}, 31, {v(vL)}
    v_lshrrev_b32 {v(vNEG)}, 5, {v(vL)}
    v_lshlrev_b32 {v(vNEG)}, 2, {v(vNEG)}
    v_sub_u32 {v(vMK)}, {v(vMK)}, {v(vNEG)}
    v_mov_b32 {v(vNEG)}, 0xf149f2ca""")
    for r in range(0, 16, 2):
        k0 = 8 * (r // 4) + r % 4
        a(f"""v_cmp_gt_i32 vcc, {k0}, {v(vMK)}
        v_cmp_gt_i32 {s(sMASK, 2)}, {k0 + 1}, {v(vMK)}
        s_nop 0
        v_cndmask_b32 {v(MD + r)}, 0, {v(vNEG)}, vcc
        v_cndmask_b32 {v(MD + r + 1)}, 0, {v(vNEG)}, {s(sMASK, 2)}""")
    a(f"""v_subrev_u32 {v(vMK)}, {XK - 16384 - XQ}, {v(vKL)}
    v_add_u32 {v(vA)}, {s(sM0X)}, {v(vL16)}
    v_add_u32 {v(vB2)}, {s(sM0X)}, {v(vVP)}
    v_add_u32 {v(vM)}, {XK - 16384}, {v(vA)}
    s_lshl_b32 {s(sMASK)}, 1, {s(sNB)}
    s_sub_u32 {s(sMASK)}, {s(sMASK)}, 1
    s_mov_b32 {s(sMASK + 1)}, 0
    s_mov_b32 {s(T1)}, 0x3eb8aa3b
    s_add_u32 {s(T3)}, {s(sOS)}, {65536 if cfg.oin else 32768}""")
    def trigger():
        a(f"""s_lshl_b32 {s(T0)}, s2, 7
        s_add_u32 {s(T0)}, {s(T0)}, {F5}
        v_mov_b32 {v(254)}, {s(T0)}
        v_mov_b32 {v(255)}, {s(sTAG)}
        s_mov_b64 exec, 1""")
        vmem(f"buffer_store_dword {v(255)}, {v(254)}, {s(SWS, 4)}, 0 offen", ("trig",))
        a("s_mov_b64 exec, -1")
    def kv_rd(st, ks):
        base = (st % 3) * SLOT
        out = [f"ds_read_b128 {v(XF + 16 * st + 4 * ks, 4)}, {v(vXR + ks)} offset:{base}"]
        for p in range(2):
            for u in range(2):
                out.append(f"ds_read_b64_tr_b16 {v(WF + 8 * ks + 4 * p + 2 * u, 2)}, {v(vWR)} offset:{base + 4096 * ks + 1024 * p + 512 * u}")
        return out
    def kv_mf(st, ks):
        x = XF + 16 * st + 4 * ks
        first = (st == 0 and ks == 0)
        return [mf(AK, WF + 8 * ks, x, None if first else AK), mf(AV, x, WF + 8 * ks + 4, None if first else AV)]
    nop = lambda: None
    for st in range(8):
        a.c("---- KV stage %d" % st)
        wait_vm(last(st))
        a("s_barrier")
        if st == 0: stamp(1)
        if st == 1:
            a(f"""s_add_u32 {s(sTAG)}, {s(sEP0)}, {hex(TAGINC)}
            s_add_u32 {s(sEP1)}, {s(sEP1)}, {hex(TAGINC)}
            s_and_b32 {s(sTAG)}, {s(sTAG)}, 0xffffff00
            s_and_b32 {s(sEP1)}, {s(sEP1)}, 0xffffff00
            s_or_b32 {s(sTAGX)}, {s(sTAGX)}, {s(sTAG)}
            v_mov_b32 {v(vFV)}, {s(sEP1)}""")
            if cfg.h4g: a(f"s_add_u32 {s(sTAG4)}, {s(sTAG4)}, {hex(TAGINC)}")
        if st == 3 and cfg.h4g: a(f"v_add_u32 {v(vE4)}, {hex(TAGINC)}, {v(vE4)}")
        if cfg.trig == st and st >= 1: trigger()
        D = dma(st + 2) if st + 2 <= 8 + cfg.qall else [nop] * 6
        R = kv_rd(st, 0) + kv_rd(st, 1) + kv_rd(st, 2) + kv_rd(st, 3)
        P = (kv_mf(st - 1, 2) + kv_mf(st - 1, 3)) if st > 0 else [""] * 4
        M = kv_mf(st, 0) + kv_mf(st, 1)
        r = lambda i, j: a("\n".join(R[i:j]))
        r(0, 3); a(P[0]); r(3, 5); D[0](); a(P[1]); r(5, 8); a(P[2]); r(8, 10); D[1](); a(P[3]); r(10, 13); D[2]()
        a("s_waitcnt lgkmcnt(8)"); a(M[0]); r(13, 15); D[3](); a(M[1]); r(15, 18)
        a("s_waitcnt lgkmcnt(8)"); a(M[2]); r(18, 20); D[4](); a(M[3]); D[5]()
        if st < 7: a("s_waitcnt lgkmcnt(0)")
    if cfg.qall:
        a("s_waitcnt lgkmcnt(0)")
        wait_vm(last(8))
        a("s_barrier")
        ones = lambda r: f"v_mov_b64 {v(VF + r, 2)}, {s(sONE, 2)}"
        nds = [0]; dsidx = {}
        def qrd(i):
            c, ks = i // 4, i % 4
            st = 8 + c // 3; n = c % 3
            for u in range(2):
                a(f"ds_read_b64_tr_b16 {v(WF + 4 * (i & 7) + 2 * u, 2)}, {v(vWQ2 if st == 8 else vWQ)} offset:{(0 if st == 8 else (st % 3) * SLOT) + 8192 * n + 2048 * ks + 512 * u}")
            nds[0] += 2; dsidx[i] = nds[0]
        def pub2():
            a("s_waitcnt vmcnt(0)\ns_barrier\ns_mov_b64 exec, 1")
            vmem(f"buffer_store_dword {v(vFV)}, {v(vFA)}, {s(SWS, 4)}, 0 offen sc1", ("f2",))
            a("s_mov_b64 exec, -1")
            stamp(3)
        PK = (AK, AK + 4, AV + 8, AV + 12)
        fills = [f"v_sub_f32 {v(MBK + r)}, {v(vNEG)}, {v(MD + r)}" for r in range(16)] + [ones(r) for r in range(0, 80, 2)]
        assert 20 <= cfg.pubat <= 31
        D = dma(10); P = kv_mf(7, 2) + kv_mf(7, 3)
        for i in range(4): a(P[i]); D[i](); qrd(i)
        stamp(2)
        for i in range(32):
            if i + 4 == 12: wait_vm(last(9)); a("s_barrier")
            if i + 4 == 24: wait_vm(last(10)); a("s_barrier")
            if i + 4 < 32: qrd(i + 4)
            a(f"s_waitcnt lgkmcnt({nds[0] - dsidx[i]})")
            a(mf(AQ, WF + 4 * (i & 7), XF + 4 * i, None if i == 0 else AQ))
            for n, at in enumerate(cfg.stat):
                if at != i: continue
                q = (0, 1, 3, 2)[n]
                acc = (AK, AK + 8, AV, AV + 8)[q]
                for k in ((3, 2, 1, 0) if q == 3 else range(4)): a(f"v_cvt_pk_bf16_f32 {v(PK[q] + k)}, {v(acc + 2 * k)}, {v(acc + 2 * k + 1)}")
                vmem(f"buffer_store_dwordx4 {v(PK[q], 4)}, {v(vL16 if q < 2 else vVS)}, {s(SWS, 4)}, {s(sKS1 if q == 1 else sKS)} offen{('', '', ' offset:1024', ' offset:1536')[q]} sc1", ("st", q))
            if i == cfg.wot: wotouch(vZ)
            if i == 8:  a(f"ds_write_b128 {v(vKL)}, {v(PK[0], 4)} offset:16384"); nds[0] += 1
            if i == 10: a(f"ds_write_b128 {v(vKL)}, {v(PK[1], 4)} offset:{16384 + 2048}"); nds[0] += 1
            if i == 12: a(f"ds_write_b128 {v(vVL)}, {v(PK[2], 4)} offset:{XV}"); nds[0] += 1
            if i == 14: a(f"ds_write_b128 {v(vVL)}, {v(PK[3], 4)} offset:{XV + 512}"); nds[0] += 1
            if i == cfg.pubat:
                for x in fills: a(x)
                pub2()
            if i == cfg.p2at: vmem(f"buffer_load_dword {v(vZ)}, {v(vP2)}, {s(SWS, 4)}, 0 offen sc1", ("p2",))
        a.c("---- local K/V (exchanged before the last barrier), Q epilogue")
        a(f"s_mov_b64 exec, {s(sEXV, 2)}")
        for t in range(2):
            for u in range(2): a(f"ds_read_b128 {v(VF + 8 * (8 + t) + 4 * u, 4)}, {v(vB2)} offset:{XV + 1024 * t + 512 * u}")
        a("s_mov_b64 exec, -1")
        for t in range(2): a(f"ds_read_b128 {v(KF + 4 * (8 + t), 4)}, {v(vM)} offset:{16384 + 1024 * t}")
        a("s_nop 3")
        for h in range(2):
            for i in range(8): a(f"v_mul_f32 {v(AQ + 8 * h + i)}, {s(T1)}, {v(AQ + 8 * h + i)}")
            for i in range(4): a(f"v_cvt_pk_bf16_f32 {v(S0 + 4 * h + i)}, {v(AQ + 8 * h + 2 * i)}, {v(AQ + 8 * h + 2 * i + 1)}")
            a(f"ds_write_b128 {v(vMK)}, {v(S0 + 4 * h, 4)} offset:{2048 * h}")
        if cfg.p2at > 31: vmem(f"buffer_load_dword {v(vZ)}, {v(vP2)}, {s(SWS, 4)}, 0 offen sc1", ("p2",))
        a("s_waitcnt lgkmcnt(0)\ns_barrier")
        for t in (1, 0): a(f"ds_read_b128 {v(QF + 4 * t, 4)}, {v(vA)} offset:{XQ + 1024 * t}")
        stamp(4)
    a(f"""v_and_b32 {v(vNEG)}, 7, {v(vL)}
    v_lshrrev_b32 {v(vM)}, 3, {v(vL)}""")
    if cfg.oin:
        a(f"""v_lshlrev_b32 {v(vOL)}, 4, {v(vNEG)}
        v_lshl_add_u32 {v(vOL)}, {v(vM)}, 11, {v(vOL)}""")
    a(f"""v_lshlrev_b32 {v(vNEG)}, {11 if cfg.oin else 7}, {v(vNEG)}
    v_lshl_add_u32 {v(vNEG)}, {v(vM)}, {16 if cfg.oin else 15}, {v(vNEG)}""")
    if cfg.wota >= 0:
        a(f"""s_lshl2_add_u32 {s(sKX)}, {s(sJ)}, {s(sWV)}
        s_lshl_b32 {s(sKX)}, {s(sKX)}, 12
        v_lshlrev_b32 v185, 10, {v(vL)}""")
        if cfg.wotm != "0xf":
            a(f"""s_lshl_b32 {s(T0)}, {s(sG)}, 7
            s_sub_u32 {s(T0)}, {s(T0)}, {4096 + 384}
            v_add_u32 v185, 384, v185
            s_mov_b64 exec, 0xf0
            v_add_u32 v185, {s(T0)}, v185
            s_mov_b64 exec, -1""")
    def wota():
        a(f"s_mov_b64 exec, {cfg.wotm}")
        vmem(f"buffer_load_dword v186, v185, {s(SWO, 4)}, {s(sKX)} offen" + (" offset:384" if cfg.wotm == "0xf" else ""), ("wota",))
        a("s_mov_b64 exec, -1")
    SB = [S0, S1]
    a("s_waitcnt lgkmcnt(1)")
    a(mf(S0, KF + 4 * 9, QF + 4, MD))
    a.c("---- halo flags (first read was issued during the last Q stage)")
    a(f"s_mov_b32 {s(sCNT)}, {SPIN}")
    a.label("L_b_poll2")
    a(f"""s_waitcnt vmcnt(0)
    v_cmp_ne_u32 vcc, {s(sTAG)}, {v(vZ)}
    s_sub_u32 {s(sCNT)}, {s(sCNT)}, 1
    s_and_b64 vcc, vcc, {s(sMASK, 2)}
    s_cbranch_scc0 L_b_poll2_x""")
    if cfg.slp: a(f"s_sleep {cfg.slp}")
    a(f"""buffer_load_dword {v(vZ)}, {v(vP2)}, {s(SWS, 4)}, 0 offen sc1
    s_cmp_lg_u32 {s(sCNT)}, 0
    s_cbranch_scc1 L_b_poll2
    s_waitcnt vmcnt(0)""")
    g.mark(188, 0)
    a.label("L_b_poll2_x")
    stamp(5)
    def halo(b):
        def kl(t): vmem(f"buffer_load_dwordx4 {v(KF + 4 * (6 - 2 * b + t), 4)}, {v(vL16)}, {s(SWS, 4)}, {s(sHB)} offen offset:{2048 * t} sc1", ("k", 6 - 2 * b + t))
        late = (b == 0 and cfg.h7first)
        kl(1)
        if not late: kl(0)
        a(f"s_mov_b64 exec, {s(sEXV, 2)}")
        for t in (1, 0):
            for u in range(2):
                vmem(f"buffer_load_dwordx4 {v(VF + 8 * (6 - 2 * b + t) + 4 * u, 4)}, {v(vVP)}, {s(SWS, 4)}, {s(sHB)} offen offset:{2048 * t + 1024 + 512 * u} sc1", ("v", 6 - 2 * b + t, u))
        a("s_mov_b64 exec, -1")
        if late: kl(0)
        if b < 3: a(f"s_addk_i32 {s(sHB)}, -4096")
    def wo4(q):
        a(f"s_add_u32 m0, {s(sWL)}, {4096 * q}\ns_add_u32 {s(T2)}, {s(sWG)}, {32768 * q}")
        for n in range(4): vmem(L % (v(vWO + n), s(SWO, 4), s(T2), f" offset:{1024 * n}" if n else ""), ("wo", 4 * q + n))
    a(f"""v_and_b32 {v(vNEG)}, 7, {v(vL)}
    v_lshrrev_b32 {v(vM)}, 3, {v(vL)}""") if False else None
    def otouch():
        a("s_mov_b64 exec, 0xffff")
        vmem(f"buffer_load_dword {v(vZ)}, {v(vNEG)}, {s(SO_, 4)}, {s(sOS)} offen sc1", ("ot",))
        a("s_mov_b64 exec, -1")
    halo(0)
    if cfg.trig == 11: trigger()
    if not cfg.qall:
        a("s_waitcnt lgkmcnt(0)\ns_barrier")
        for t in (1, 0): a(f"ds_read_b128 {v(QF + 4 * t, 4)}, {v(vA)} offset:{XQ + 1024 * t}")
    SB = [S0, S1]; OB = [OA, NM]
    def smf(n, U):
        qt, kt = U
        return mf(SB[n & 1], KF + 4 * kt, QF + 4 * qt, MD if kt == qt + 8 else (MBK if kt == qt else None))
    def pv(U, u):
        qt, kt = U
        return mf(OB[qt], VF + 8 * kt + 4 * u, PB + 4 * u, None if (kt == qt + 8 and u == 0) else OB[qt])
    def cvt(n, i): return f"v_cvt_pk_bf16_f32 {v(PB + i)}, {v(SB[n & 1] + 2 * i)}, {v(SB[n & 1] + 2 * i + 1)}"
    def unit(n, U, nxt, prev, mem):
        S = SB[n & 1]
        e = lambda i: a(f"v_exp_f32 {v(S + i)}, {v(S + i)}")
        c = lambda i: a(cvt(n, i))
        e(0)
        if prev is not None: a(cvt(n - 1, 7))
        e(1); e(2)
        if prev is not None: a(pv(prev, 1))
        c(0); e(3); e(4); c(1)
        if nxt is not None:
            if nxt[0] == 0 and nxt[1] < 8:
                if cfg.h7first and nxt[1] >= 6: wait_vm(("k", nxt[1]))
                else: wait_vm(("v", nxt[1], 1))
            a(smf(n + 1, nxt))
        e(5); e(6); c(2)
        run(mem)
        e(7); e(8); c(3); e(9); e(10)
        if cfg.h7first and U == (0, 7): wait_vm(("v", 7, 1))
        a(pv(U, 0))
        c(4); e(11); e(12); c(5); e(13); e(14); c(6); e(15)
    OSC = " sc1" if cfg.h4g else ""
    def o_out(qt, O):
        a(f"v_rcp_f32 {v(vA)}, {v(O + 8)}\ns_nop 0")
        for i in range(8): a(f"v_mul_f32 {v(O + i)}, {v(vA)}, {v(O + i)}")
        for i in range(4): a(f"v_cvt_pk_bf16_f32 {v(SB[qt] + i)}, {v(O + 2 * i)}, {v(O + 2 * i + 1)}")
        a(f"buffer_store_dwordx4 {v(SB[qt], 4)}, {v(vOL)}, {s(SO_, 4)}, {s(sOS if qt == 0 else T3)} offen{OSC}")
    assert cfg.fast
    a.c("---- attention without max subtraction; the row sums are checked afterwards")
    UN = [(1, 9), (0, 8), (1, 8)]
    for kt in range(7, 0, -1): UN += [(0, kt), (1, kt)]
    UN.append((0, 0))
    a("s_waitcnt lgkmcnt(0)")
    todo = {}
    for b, n in enumerate(cfg.hsched): todo.setdefault(n, []).append(("h", lambda b=b: halo(b + 1)))
    if not cfg.h4g: todo.setdefault(cfg.tsched, []).append(("t", otouch))
    for q, n in enumerate(cfg.wsched): todo.setdefault(n, []).append(("w", lambda q=q: wo4(q)))
    if cfg.wota >= 0: todo.setdefault(cfg.wota, []).append(("h", wota))
    todo.setdefault(2, []).insert(0, ("h", lambda: a("s_barrier")))
    assert min(cfg.wsched) >= 2
    for n, U in enumerate(UN):
        nxt = UN[n + 1] if n + 1 < len(UN) else None
        if n == 3: stamp(6)
        unit(n, U, nxt, UN[n - 1] if n else None, [f for _, f in todo.get(n, [])])
        if U[0] == 1 and U[1] in (8, 6, 4, 2):
            nb = (8 - U[1]) // 2
            a(f"s_cmp_eq_u32 {s(sNB)}, {nb}\ns_cbranch_scc1 L_b_fx{nb}")
            def t_fx(nb=nb, U=U, n=n):
                a.label(f"L_b_fx{nb}")
                a(cvt(n, 7)); a("s_nop 1"); a(pv(U, 1))
                for m in range(n + 1, 18):
                    for k, f in todo.get(m, []):
                        if k != "h": f()
                a("s_nop 9\ns_branch L_b_fdone")
            g.tails.append(t_fx)
    a("s_nop 0"); a(cvt(17, 7)); a("s_nop 1"); a(pv(UN[-1], 1))
    a.label("L_b_fdone")
    a(f"""s_mov_b32 {s(T0)}, 0x1f800000
    s_mov_b32 {s(T1)}, 0x40000000
    v_subrev_u32 {v(vM)}, {s(T0)}, {v(OB[1] + 8)}
    v_cmp_lt_u32 {s(sMASK, 2)}, {s(T1)}, {v(vM)}""")
    a(f"v_rcp_f32 {v(vB2)}, {v(OB[1] + 8)}\ns_nop 0")
    for i in range(8): a(f"v_mul_f32 {v(S1 + 8 + i)}, {v(vB2)}, {v(OB[1] + i)}")
    a(f"""v_subrev_u32 {v(vM)}, {s(T0)}, {v(OB[0] + 8)}
    v_cmp_lt_u32 vcc, {s(T1)}, {v(vM)}
    v_rcp_f32 {v(vA)}, {v(OB[0] + 8)}
    s_or_b64 vcc, vcc, {s(sMASK, 2)}
    s_cbranch_scc1 L_b_slow""")
    for i in range(4): a(f"v_cvt_pk_bf16_f32 {v(S1 + i)}, {v(S1 + 8 + 2 * i)}, {v(S1 + 9 + 2 * i)}")
    a(f"buffer_store_dwordx4 {v(S1, 4)}, {v(vOL)}, {s(SO_, 4)}, {s(T3)} offen{OSC}")
    for i in range(8): a(f"v_mul_f32 {v(OA + i)}, {v(vA)}, {v(OA + i)}")
    for i in range(4): a(f"v_cvt_pk_bf16_f32 {v(S0 + i)}, {v(OA + 2 * i)}, {v(OA + 2 * i + 1)}")
    a(f"buffer_store_dwordx4 {v(S0, 4)}, {v(vOL)}, {s(SO_, 4)}, {s(sOS)} offen{OSC}")
    a.label("L_b_att_done")
    def slow():
        a.label("L_b_slow")
        for qt in range(2):
            a.c("---- attention q tile %d (two pass, true max)" % qt)
            a(f"s_lshl1_add_u32 {s(sQ)}, {s(sRB)}, {qt}")
            q = QF + 4 * qt
            kf = lambda t: KF + 4 * (qt + 8 - t)
            cm = lambda t: MD if t == 0 else (MBK if t == 8 else None)
            a(f"v_mov_b32 {v(vM)}, 0xf149f2ca\ns_nop 0")
            a(mf(SB[0], kf(0), q, cm(0)))
            for t in range(9):
                if t < 8: a(mf(SB[(t + 1) & 1], kf(t + 1), q, cm(t + 1)))
                a("s_nop %d" % (10 if t == 0 else 1))
                S = SB[t & 1]
                for i in range(8): a(f"v_max3_f32 {v(vM)}, {v(S + 2 * i)}, {v(S + 2 * i + 1)}, {v(vM)}")
                if t < 8: a(f"s_cmp_le_u32 {s(sQ)}, {t}\ns_cbranch_scc1 L_b_p1done{qt}")
            a.label(f"L_b_p1done{qt}")
            a(f"v_mov_b32 {v(vA)}, {v(vM)}\ns_nop 1\nv_permlane32_swap_b32 {v(vM)}, {v(vA)}\nv_max_f32 {v(vM)}, {v(vM)}, {v(vA)}")
            for i in range(16): a(f"v_sub_f32 {v(NM + i)}, 0, {v(vM)}")
            for i in range(16): a(f"v_sub_f32 {v(SB[0] + i)}, {v(MD + i)}, {v(vM)}")
            a("s_nop 1")
            a(mf(SB[0], kf(0), q, SB[0]))
            for t in range(9):
                S = SB[t & 1]; N = SB[(t + 1) & 1]
                if t < 7: a(mf(N, kf(t + 1), q, NM))
                if t == 7:
                    for i in range(16): a(f"v_sub_f32 {v(N + i)}, {v(MBK + i)}, {v(vM)}")
                    a("s_nop 1")
                    a(mf(N, kf(8), q, N))
                if t == 0: a("s_nop 10")
                kt = qt + 8 - t
                for u in range(2):
                    for i in range(8): a(f"v_exp_f32 {v(S + 8 * u + i)}, {v(S + 8 * u + i)}")
                    for i in range(4): a(f"v_cvt_pk_bf16_f32 {v(PB + 4 * u + i)}, {v(S + 8 * u + 2 * i)}, {v(S + 8 * u + 2 * i + 1)}")
                    a("s_nop 1")
                    a(mf(OA, VF + 8 * kt + 4 * u, PB + 4 * u, None if (t == 0 and u == 0) else OA))
                if t < 8: a(f"s_cmp_le_u32 {s(sQ)}, {t}\ns_cbranch_scc1 L_b_p2done{qt}")
            a.label(f"L_b_p2done{qt}")
            a("s_nop 11")
            o_out(qt, OA)
        a("s_branch L_b_att_done")
    g.tails.append(slow)
    stamp(7)
    a.c("---- wo fragments, publish o")
    WOF, OF, AC = 0, 128, 192
    a(f"""v_bfe_u32 v224, {v(vL)}, 2, 2
    v_lshrrev_b32 v225, 5, {v(vL)}
    v_lshl_add_u32 v224, v225, 2, v224
    v_lshlrev_b32 v224, 7, v224
    v_bfe_u32 v226, {v(vL)}, 3, 1
    v_lshl_add_u32 v224, v226, 6, v224
    v_and_b32 v226, 1, {v(vL)}
    v_lshl_add_u32 v224, v226, 5, v224
    v_bfe_u32 v226, {v(vL)}, 4, 1
    v_lshl_add_u32 v224, v226, 4, v224
    v_bfe_u32 v226, {v(vL)}, 1, 1
    v_lshl_add_u32 v224, v226, 3, v224
    s_lshr_b32 {s(T1)}, {s(sWV)}, 1
    s_lshl_b32 {s(T2)}, {s(T1)}, 15
    v_add_u32 v224, {s(T2)}, v224
    v_xor_b32 v226, 64, v224
    v_mov_b32 {v(vA)}, {s(sME)}
    v_mov_b32 {v(vB2)}, {s(sTAGX)}
    s_waitcnt vmcnt(2)
    s_barrier""")
    def wrd(hd):
        for ct in range(2):
            for u in range(2): a(f"ds_read_b64_tr_b16 {v(WOF + 8 * hd + 4 * ct + 2 * u, 2)}, {v(224 + 2 * ct)} offset:{2048 * hd + 1024 * u}")
    N1, N2 = cfg.n12
    for hd in range(N1): wrd(hd)
    if cfg.h4g: a(f"s_waitcnt vmcnt(0)\ns_mov_b64 exec, 0xff\nbuffer_store_dword {v(vE4)}, {v(vF4)}, {s(SWS, 4)}, 0 offen sc1\ns_mov_b64 exec, -1")
    else: a(f"s_waitcnt vmcnt(0)\ns_mov_b64 exec, 1\nbuffer_store_dword {v(vB2)}, {v(vA)}, {s(SWS, 4)}, 0 offen\ns_mov_b64 exec, -1")
    stamp(8)
    for hd in range(N1, N2): wrd(hd)
    sOL = sOS
    sO4 = (sOS, sHB, sWL, sWG)
    if cfg.oin:
        a(f"""s_and_b32 {s(T0)}, {s(sWV)}, 1
        s_lshl1_add_u32 {s(T2)}, {s(sRB)}, {s(T0)}
        s_lshl_b32 {s(T2)}, {s(T2)}, 16
        s_lshl_b32 {s(T3)}, {s(T1)}, 9
        s_xor_b32 {s(T3)}, {s(T3)}, {128 * cfg.cqx}
        s_add_u32 {s(T2)}, {s(T2)}, {s(T3)}
        v_mov_b32 {v(vNEG)}, {v(vOL)}""")
        for k in range(4): a(f"s_add_u32 {s(sO4[k])}, {s(T2)}, {1024 + 16384 * k}")
    else:
        a(f"""s_and_b32 {s(T0)}, {s(sWV)}, 1
        s_lshl1_add_u32 {s(T2)}, {s(sRB3)}, {s(T0)}
        s_lshl1_add_u32 {s(T2)}, {s(T2)}, {s(T1)}
        s_lshl_b32 {s(T2)}, {s(T2)}, 14
        s_add_u32 {s(sOL)}, {s(T2)}, {O_OFF}""")
    if cfg.h4g:
        a("s_mov_b64 exec, 0xffff")
        g.poll_group("L_b_poll4", 1, vP4, 228, SWS, sTAG4, sTAG4, sCNT, sTMO, sME, sMASK, glob=True)
        a("s_mov_b64 exec, -1")
    else: g.poll_group("L_b_poll4", 1, vP4, 228, SWS, sTAGX, sTAG, sCNT, sTMO, sME, sMASK)
    stamp(9)
    def oload(i):
        if cfg.oin:
            a(f"buffer_load_dwordx4 {v(OF + 4 * i, 4)}, {v(vNEG)}, {s(SOUT, 4)}, {s(sO4[i & 3])} offen offset:{128 * (i >> 2)} sc1"); return
        a(f"buffer_load_dwordx4 {v(OF + 4 * i, 4)}, {v(vL16)}, {s(SWS, 4)}, {s(sOL)} offen offset:{1024 * (i & 3)} sc1")
        if i & 3 == 3 and i < 15: a(f"s_addk_i32 {s(sOL)}, 4096")
    for i in range(cfg.b3pre): oload(i)
    for hd in range(N2, 16): wrd(hd)
    RS = 272
    fin = f"""v_and_b32 v227, 31, {v(vL)}
    s_lshl1_add_u32 {s(T3)}, {s(T1)}, {s(T0)}
    s_mul_i32 {s(T3)}, {s(T3)}, {32 * RS}
    v_mul_u32_u24 v227, {RS}, v227
    v_lshl_add_u32 v227, v225, 6, v227
    v_add_u32 v227, {s(T3)}, v227
    v_lshrrev_b32 v230, 3, {v(vL)}
    s_lshl_b32 {s(T3)}, {s(sWV)}, 4
    v_add_u32 v230, {s(T3)}, v230
    v_and_b32 v231, 7, {v(vL)}
    v_mul_u32_u24 v228, {RS}, v230
    v_lshl_add_u32 v228, v231, 5, v228
    v_lshlrev_b32 v229, 11, v230
    v_lshl_add_u32 v229, v231, 4, v229
    s_lshl_b32 {s(T2)}, {s(sRB3)}, 17
    s_lshl_b32 {s(T3)}, {s(sCQ)}, 7
    s_add_u32 {s(T2)}, {s(T2)}, {s(T3)}
    s_add_u32 {s(T2)}, {s(T2)}, 1024
    s_add_u32 {s(T3)}, {s(T2)}, 16384""".split("\n")
    if cfg.oin:
        fin += [f"s_add_u32 {s(sME)}, {s(sME)}, {F6 - F4}", f"v_add_u32 {v(vP4)}, {F6 - F4}, {v(vP4)}", f"v_mov_b32 {v(vA)}, {s(sME)}",
                f"s_lshl2_add_u32 {s(T0)}, {s(sRB)}, {EPB}", f"v_writelane_b32 {v(vA)}, {s(T0)}, 1", f"v_mov_b32 {v(vB2)}, {s(sTAGX)}", f"v_writelane_b32 {v(vB2)}, {s(sTAG)}, 1"]
    for i in range(16):
        if i + cfg.b3pre < 16: oload(i + cfg.b3pre)
        a("s_waitcnt vmcnt(%d)%s" % (min(cfg.b3pre, 15 - i), " lgkmcnt(0)" if i == 0 else ""))
        for ct in range(2):
            a(mf(AC + 16 * ct, WOF + 8 * i + 4 * ct, OF + 4 * i, None if i == 0 else AC + 16 * ct))
            k = 2 * i + ct
            if k < len(fin): a(fin[k])
        if i == 12: a("s_barrier")
    stamp(10)
    if cfg.oin:
        a(f"""s_mov_b64 exec, 3
        buffer_store_dword {v(vB2)}, {v(vA)}, {s(SWS, 4)}, 0 offen
        s_mov_b64 exec, -1
        s_nop 7""")
    elif cfg.h4g:
        a(f"""v_mov_b32 {v(vA)}, {s(sF4)}
        v_mov_b32 {v(vB2)}, {s(sTAG)}
        v_writelane_b32 {v(vA)}, {s(sME)}, 1
        v_writelane_b32 {v(vB2)}, {s(sTAG4)}, 1
        s_mov_b64 exec, 3
        buffer_store_dword {v(vB2)}, {v(vA)}, {s(SWS, 4)}, 0 offen
        s_mov_b64 exec, -1
        s_nop 3""")
    else:
        a(f"""s_lshl2_add_u32 {s(T0)}, {s(sRB)}, {EPB}
        v_mov_b32 {v(vA)}, {s(T0)}
        v_mov_b32 {v(vB2)}, {s(sTAG)}
        s_mov_b64 exec, 1
        buffer_store_dword {v(vB2)}, {v(vA)}, {s(SWS, 4)}, 0 offen
        s_mov_b64 exec, -1
        s_nop 4""")
    for ct in range(2):
        for q4 in range(4): a(f"ds_write_b128 v227, {v(AC + 16 * ct + 4 * q4, 4)} offset:{128 * ct + 16 * q4}")
    a("s_waitcnt lgkmcnt(0)")
    if cfg.oin: a(f"buffer_load_dword v232, {v(vP4)}, {s(SWS, 4)}, 0 offen sc1")
    a("s_barrier")
    for e in range(2):
        for kh in range(2):
            for hf in range(2): a(f"ds_read_b128 {v(16 * e + 8 * kh + 4 * hf, 4)}, v228 offset:{8 * RS * e + 64 * RS * kh + 16 * hf}")
    fst = lambda e: a(f"buffer_store_dwordx4 {v(32 + 4 * e, 4)}, v229, {s(SOUT, 4)}, {s(T2 if e == 0 else T3)} offen{cfg.bosc}")
    for e in range(2):
        a("s_waitcnt lgkmcnt(%d)" % (4 - 4 * e))
        for i in range(8): a(f"v_add_f32 {v(16 * e + i)}, {v(16 * e + i)}, {v(16 * e + 8 + i)}")
        for i in range(4): a(f"v_cvt_pk_bf16_f32 {v(32 + 4 * e + i)}, {v(16 * e + 2 * i)}, {v(16 * e + 2 * i + 1)}")
        if not cfg.oin: fst(e)
    if cfg.oin:
        a(f"""s_waitcnt vmcnt(0)
        v_cmp_ne_u32 vcc, {s(sTAGX)}, v232
        s_nop 0
        s_cmp_eq_u64 vcc, 0
        s_cbranch_scc1 L_b_poll6_x""")
        g.poll_group("L_b_poll6", 1, vP4, 232, SWS, sTAGX, sTAG, sCNT, sTMO, sME, sMASK, 0)
        fst(0); fst(1)
    g.stamp_flush(SWS, sWV)
    a("s_endpgm")
    g.flush_tails()

class RA:
    SK, SV, SQ, SH, SO, SWS = 4, 8, 12, 16, 20, 24
    PSK, PSD = 28, 30
    sG, sJ, sWV, T0, T1, T2, T3, sEP, sTAG, sCNT = 32, 33, 34, 35, 36, 37, 38, 39, 40, 41
    sMASK = 42
    sTAGX, sTMO, sME, sEPB, sM0 = 44, 45, 46, 47, 48
    KT, VT, QT, UL, RB, HB = 0, 9216, 17408, 25600, 34816, 34824
    HS, US, OT = 4160, 4608, 0
    vL, vT = 1, 2
    vD0, vD1, vK0, vK1 = 96, 97, 18, 19
    TP, vDD, HD = 20, 24, 28
    vA0, vA1, vUS, vUL = 44, 45, 46, 47
    vCA, vCB, vRW, vPF, vH0, vH1, vTO = 16, 17, 98, 99, 25, 26, 27

def a_hload(a):
    R = RA
    a(f"""s_movk_i32 {s(R.T3)}, 4096
    buffer_load_dwordx4 {v(R.HD + 2, 4)}, {v(R.vH0)}, {s(R.SH, 4)}, 0 offen
    buffer_load_dwordx4 {v(R.HD + 10, 4)}, {v(R.vH0)}, {s(R.SH, 4)}, {s(R.T3)} offen
    buffer_load_dwordx2 {v(R.HD, 2)}, {v(R.vH1)}, {s(R.SH, 4)}, 0 offen
    buffer_load_dwordx2 {v(R.HD + 8, 2)}, {v(R.vH0)}, {s(R.SH, 4)}, 0 offen offset:4088""")

def progA0(g):
    a, cfg, R = g.a, g.cfg, RA
    a.label("L_A")
    if not cfg.afirst: a("s_cmp_ge_u32 s2, 512\ns_cbranch_scc1 L_end")
    if cfg.only == "B": a("s_branch L_end")
    g.stamp(0)
    if cfg.a0prio: a(f"s_setprio {cfg.a0prio}")
    a(f"""s_load_dwordx2 {s(R.SK, 2)}, s[0:1], 8
    s_load_dwordx2 {s(R.SV, 2)}, s[0:1], 16
    s_load_dwordx2 {s(R.SH, 2)}, s[0:1], 32
    s_load_dwordx2 {s(R.PSK, 2)}, s[0:1], 24
    v_lshrrev_b32 v2, 6, v0
    s_and_b32 {s(R.sG)}, s2, 7
    s_bfe_u32 {s(R.sJ)}, s2, 0x50003
    v_readfirstlane_b32 {s(R.sWV)}, v2
    v_lshrrev_b32 v3, 3, v0
    v_and_b32 v4, 7, v0
    v_xor_b32 v5, v4, v2
    v_lshlrev_b32 v5, 4, v5
    s_lshl_b32 {s(R.T0)}, {s(R.sJ)}, 16
    s_lshl_b32 {s(R.T1)}, {s(R.sG)}, 7
    s_add_u32 {s(R.T0)}, {s(R.T0)}, {s(R.T1)}
    v_lshl_add_u32 {v(R.vD0)}, v3, 10, v5
    v_add_u32 {v(R.vD0)}, {s(R.T0)}, {v(R.vD0)}
    v_xor_b32 {v(R.vD1)}, 64, {v(R.vD0)}
    v_add_u32 {v(R.vD1)}, 32768, {v(R.vD1)}
    v_subrev_u32 {v(R.vK0)}, 8192, {v(R.vD0)}
    v_subrev_u32 {v(R.vK1)}, 8192, {v(R.vD1)}
    s_lshl_b32 {s(R.sM0)}, {s(R.sWV)}, 10
    s_lshl_b32 {s(R.T2)}, {s(R.sG)}, 5
    s_add_u32 {s(R.T2)}, {s(R.T2)}, {s(R.sJ)}
    s_lshl_b32 {s(R.T2)}, {s(R.T2)}, 13
    v_lshl_add_u32 {v(R.vH0)}, v0, 4, {s(R.T2)}
    v_subrev_u32 {v(R.vH1)}, 8, {v(R.vH0)}
    s_lshl_b32 {s(R.T0)}, {s(R.sG)}, 9
    v_lshl_add_u32 v6, v3, 4, {s(R.T0)}""")
    for r in (R.SK, R.SV, R.SH): g.srd(r, 2 * MB)
    a(f"""s_cmp_lg_u32 {s(R.sWV)}, 0
    s_waitcnt lgkmcnt(0)
    global_load_dwordx4 {v(R.TP, 4)}, v6, {s(R.PSK, 2)}
    s_cbranch_scc1 L_a_nok8
    s_mov_b32 m0, {R.KT + 8192}
    s_mov_b32 {s(R.T3)}, {7 * 8192}
    buffer_load_dwordx4 {v(R.vD0)}, {s(R.SK, 4)}, {s(R.T3)} offen lds""")
    a.label("L_a_nok8")
    for (vo, sr, dst) in ((R.vK0, R.SK, R.KT), (R.vK1, R.SK, R.KT + 4096), (R.vD0, R.SV, R.VT), (R.vD1, R.SV, R.VT + 4096)):
        a(f"s_add_u32 m0, {s(R.sM0)}, {dst}\ns_nop 0\nbuffer_load_dwordx4 {v(vo)}, {s(sr, 4)}, 0 offen lds")
    if not cfg.hlate: a_hload(a)
    g.stamp(12)
    a("s_branch L_A1")

def progA(g):
    a, cfg = g.a, g.cfg
    def stamp(i):
        g.stamp(i)
        if cfg.cut == i: a('s_branch L_a_noepoch')
    globals().update({k: x for k, x in vars(RA).items() if not k.startswith("_")})
    a.label("L_A1")
    a(f"""s_load_dwordx2 {s(SQ, 2)}, s[0:1], 0
    s_load_dwordx2 {s(SO, 2)}, s[0:1], 72
    s_load_dwordx2 {s(SWS, 2)}, s[0:1], 88
    s_load_dwordx2 {s(PSD, 2)}, s[0:1], 40""")
    g.srd(SQ, 2 * MB); g.srd(SO, 4 * MB); g.srd(SWS, WS_SIZE)
    a(f"""v_and_b32 {v(vL)}, 63, v0
    v_lshrrev_b32 v7, 2, v6
    s_add_u32 {s(T0)}, {s(T0)}, {F1}
    v_lshl_add_u32 {v(vPF)}, {v(vL)}, 3, {s(T0)}
    s_lshl2_add_u32 {s(sME)}, {s(sJ)}, {s(sWV)}
    s_lshl2_add_u32 {s(sME)}, {s(sME)}, {s(T0)}
    v_and_b32 v8, 15, v0
    v_lshl_add_u32 v8, v2, 4, v8
    s_lshl_b32 {s(T0)}, {s(sJ)}, 17
    s_add_u32 {s(T0)}, {s(T0)}, {s(T1)}
    v_lshl_add_u32 {v(vTO)}, v8, 11, {s(T0)}
""")
    def small():
        if cfg.lean:
            assert cfg.usc1
            return
        a(f"""s_movk_i32 {s(T3)}, 4096
        global_load_dword {v(vDD)}, v7, {s(PSD, 2)}
        buffer_load_dwordx2 v[14:15], {v(vPF)}, {s(SWS, 4)}, {s(T3)} offen sc1
        buffer_load_dwordx2 v[12:13], {v(vPF)}, {s(SWS, 4)}, 0 offen sc1""")
        if not cfg.usc1:
            a(f"""s_mov_b64 exec, 0xffff
            buffer_load_dword v14, {v(vTO)}, {s(SO, 4)}, 0 offen sc1
            s_mov_b64 exec, -1""")
    NLATE = -1
    a(f"""v_mov_b32 v10, 0
    v_lshrrev_b32 v8, 7, v0
    v_and_b32 v9, 127, v0
    v_mul_u32_u24 v8, {US}, v8
    v_lshl_add_u32 v8, v9, 2, v8
    ds_write_b32 v8, v10 offset:{UL}
    v_lshrrev_b32 v8, 3, {v(vL)}
    v_mul_u32_u24 v8, {HS}, v8
    v_lshl_add_u32 v8, v4, 2, v8
    ds_write_b32 v8, v10 offset:{HB}
    v_lshrrev_b32 v8, 2, v3
    v_and_b32 v9, 3, v3
    v_lshlrev_b32 v9, 2, v9
    v_lshl_add_u32 v9, v4, 10, v9
    v_xor_b32 v11, v8, v4
    v_lshl_add_u32 {v(vA0)}, v11, 4, v9
    v_add_u32 v11, 1, v4
    v_and_b32 v11, 7, v11
    v_xor_b32 v11, v8, v11
    v_lshl_add_u32 {v(vA1)}, v11, 4, v9
""")
    if cfg.awt:
        assert cfg.usc1
        a(f"""s_lshl_b32 {s(T0)}, {s(sG)}, 18
        s_add_u32 {s(T0)}, {s(T0)}, {U_OFF}
        v_lshl_add_u32 v11, v4, 4, {s(T0)}
        s_lshl_b32 {s(T0)}, {s(sJ)}, 13
        v_lshl_add_u32 {v(vUS)}, v3, 8, v11
        v_add_u32 {v(vUS)}, {s(T0)}, {v(vUS)}
        s_lshl_b32 {s(T0)}, {s(sJ)}, 8
        v_lshl_add_u32 {v(vUL)}, v3, 13, v11
        v_add_u32 {v(vUL)}, {s(T0)}, {v(vUL)}
        s_mov_b32 {s(sEPB)}, {Y_OFF - U_OFF}""")
    else:
        a(f"""v_lshl_add_u32 v11, v4, 4, {s(T1)}
        s_lshl_b32 {s(T0)}, {s(sJ)}, 17
        v_lshl_add_u32 {v(vUS)}, v3, 12, v11
        v_add_u32 {v(vUS)}, {s(T0)}, {v(vUS)}
        s_lshl_b32 {s(T0)}, {s(sJ)}, 12
        v_lshl_add_u32 {v(vUL)}, v3, 17, v11
        v_add_u32 {v(vUL)}, {s(T0)}, {v(vUL)}""")
    SS = SWS if cfg.awt else SO
    CST = 128 if cfg.awt else 2048
    YO = s(sEPB) if cfg.awt == 1 else "0"
    YSC = " sc1" if cfg.awt == 1 else ""
    a(f"""s_lshr_b32 {s(T1)}, {s(sWV)}, 1
    s_and_b32 {s(T2)}, {s(sWV)}, 1
    v_and_b32 v4, 3, v0
    v_mul_u32_u24 {v(vCA)}, {HS}, v4
    v_lshrrev_b32 v5, 4, {v(vL)}
    v_lshl_add_u32 {v(vCA)}, v5, 4, {v(vCA)}
    v_and_b32 v4, 12, v0
    v_lshl_add_u32 {v(vCA)}, v4, 1, {v(vCA)}
    s_mul_i32 {s(T3)}, {s(T1)}, {4 * HS}
    s_lshl_b32 {s(T2)}, {s(T2)}, 8
    s_add_u32 {s(T3)}, {s(T3)}, {s(T2)}
    s_add_u32 {s(T3)}, {s(T3)}, {HB}
    v_add_u32 {v(vCA)}, {s(T3)}, {v(vCA)}
    v_and_b32 v8, 15, v0
    v_lshlrev_b32 {v(vCB)}, 1, v8
    v_sub_u32 {v(vCB)}, {v(vCB)}, v5
    v_lshlrev_b32 {v(vCB)}, 4, {v(vCB)}
    s_mul_i32 {s(T3)}, {s(T1)}, {US}
    s_sub_u32 {s(T3)}, {s(T3)}, {s(T2)}
    s_add_u32 {s(T3)}, {s(T3)}, {UL + 512 + 16 - 192}
    v_add_u32 {v(vCB)}, {s(T3)}, {v(vCB)}
    v_bfe_u32 v4, v0, 1, 2
    v_xor_b32 v4, v4, v5
    v_lshlrev_b32 v4, 4, v4
    v_lshl_add_u32 {v(vRW)}, v8, 6, v4
    s_lshl_b32 {s(T3)}, {s(sWV)}, 13
    s_add_u32 {s(T3)}, {s(T3)}, {RB}
    v_add_u32 {v(vRW)}, {s(T3)}, {v(vRW)}
    s_getreg_b32 {s(sTAGX)}, hwreg(HW_REG_XCC_ID, 0, 4)
    s_mov_b32 {s(sTMO)}, {cfg.tmo}
    s_lshl2_add_u32 {s(T0)}, {s(sG)}, {EPA}
    s_waitcnt lgkmcnt(0)
    s_load_dword {s(sEP)}, {s(SWS, 2)}, {s(T0)}""")
    if cfg.lean:
        a(f"""s_or_b32 {s(T0)}, {s(sJ)}, {s(sWV)}
        s_cbranch_scc0 L_a_touch""")
        a.label("L_a_touch_x")
        def t_touch():
            a.label("L_a_touch")
            a(f"""s_movk_i32 {s(T3)}, 4096
            s_waitcnt vmcnt(0)
            buffer_load_dwordx2 v[14:15], {v(vPF)}, {s(SWS, 4)}, {s(T3)} offen sc1
            buffer_load_dwordx2 v[12:13], {v(vPF)}, {s(SWS, 4)}, 0 offen sc1
            s_branch L_a_touch_x""")
        g.tails.append(t_touch)
    SP, DP, KP, VP, UD, UPK = 68, 76, 136, 100, 116, 160
    KR, VR = 48, 60
    if cfg.aprio != cfg.a0prio: a(f"s_setprio {cfg.aprio}")
    a(f"s_waitcnt vmcnt({NLATE + 1 + (0 if cfg.hlate else 4)})")
    for jj in range(4):
        for c in range(2):
            a(("v_lshlrev_b32 %s, 16, %s" if jj % 2 == 0 else "v_and_b32 %s, 0xffff0000, %s") % (v(SP + 2 * jj + c), v(TP + 2 * c + (jj >> 1))))
    a("s_barrier")
    stamp(1)
    for jj in range(3): a(f"ds_read_b32 {v(KR + jj)}, {v(vA0)} offset:{KT + (5 + jj) * 128}")
    for jj in range(8): a(f"ds_read_b32 {v(KR + 3 + jj)}, {v(vA1)} offset:{KT + 1024 + jj * 128}")
    for jj in range(8): a(f"ds_read_b32 {v(VR + jj)}, {v(vA0)} offset:{VT + jj * 128}")
    def unpack(d, src): a(f"v_lshlrev_b32 {v(d)}, 16, {v(src)}\nv_and_b32 {v(d + 1)}, 0xffff0000, {v(src)}")
    a("s_waitcnt lgkmcnt(8)")
    for jj in range(11): unpack(KP + 2 * jj, KR + jj)
    for t in range(16): a(f"v_mul_f32 {v(UD + t)}, {v(KP + 6 + t)}, {v(SP + (t & 1))}")
    for jj in range(1, 4):
        for t in range(16): a(f"v_fmac_f32 {v(UD + t)}, {v(KP + 6 - 2 * jj + t)}, {v(SP + 2 * jj + (t & 1))}")
    small()
    a("s_waitcnt lgkmcnt(0)")
    for jj in range(8): unpack(VP + 2 * jj, VR + jj)
    for c in range(2):
        for t in range(8): a(f"v_mul_f32 {v(UD + 2 * t + c)}, {v(UD + 2 * t + c)}, {v(VP + 2 * t + c)}")
        for e in range(4): a(f"v_cvt_pk_bf16_f32 {v(UPK + 4 * c + e)}, {v(UD + 2 * (7 - 2 * e) + c)}, {v(UD + 2 * (6 - 2 * e) + c)}")
        a(f"buffer_store_dwordx4 {v(UPK + 4 * c, 4)}, {v(vUS)}, {s(SS, 4)}, 0 offen offset:{CST * c}" + (" sc1" if cfg.usc1 else ""))
    stamp(2)
    AL = 48
    a(f"""s_add_u32 {s(sTAG)}, {s(sEP)}, {hex(TAGINC)}
    s_and_b32 {s(sTAG)}, {s(sTAG)}, 0xffffff00
    s_or_b32 {s(sTAGX)}, {s(sTAGX)}, {s(sTAG)}
    v_cmp_ne_u32 vcc, 0, v0
    v_lshlrev_b32 v2, 4, v0
    v_mov_b32 v10, {s(sME)}
    v_mov_b32 v11, {s(sTAGX)}""")
    def publish(sc="", n=0): a(f"s_waitcnt vmcnt({n})\ns_mov_b64 exec, 1\nbuffer_store_dword v11, v10, {s(SWS, 4)}, 0 offen{sc}\ns_mov_b64 exec, -1")
    HC = 168
    def hprep():
        for c in range(2):
            d = HD + 8 * c
            a(f"v_cndmask_b32 {v(d)}, 0, {v(d)}, vcc\nv_cndmask_b32 {v(d + 1)}, 0, {v(d + 1)}, vcc")
            for e in range(4): a(f"v_alignbit_b32 {v(HC + 12 * c + e)}, {v(d + 1 + e)}, {v(d + e)}, 16")
            for e in range(4): a(f"v_mov_b32 {v(HC + 12 * c + 4 + e)}, {v(d + 1 + e)}")
            for e in range(4): a(f"v_alignbit_b32 {v(HC + 12 * c + 8 + e)}, {v(d + 2 + e)}, {v(d + 1 + e)}, 16")
    def hwrite():
        for c in range(2):
            for cc in range(4):
                src = HC + 12 * c + 4 * cc if cc < 3 else HD + 8 * c + 2
                a(f"ds_write_b128 v2, {v(src, 4)} offset:{HB + (4 * c + cc) * HS + 24}")
    usc = ""
    if cfg.hlate == 2:
        publish(usc); stamp(3)
    elif cfg.hlate:
        a_hload(a); publish(usc, 4); stamp(3)
        a("s_waitcnt vmcnt(1)"); hprep(); hwrite()
    elif cfg.hearly:
        publish(usc); stamp(3)
    elif cfg.usc1:
        a("s_waitcnt vmcnt(2)"); hprep(); hwrite(); publish(usc); stamp(3)
    else:
        a("s_waitcnt vmcnt(2)"); hprep(); publish(usc); stamp(3); hwrite()
    if cfg.lean: a(f"global_load_dword {v(vDD)}, v7, {s(PSD, 2)}")
    g.poll_group("L_a_poll1", 2, vPF, 12, SWS, sTAGX, sTAG, sCNT, sTMO, sME, sMASK, cfg.aslp)
    a(f"v_mov_b32 v11, {s(sTAGX)}")
    stamp(4)
    UT = 56
    for c in range(2): a(f"buffer_load_dwordx4 {v(UT + 4 * c, 4)}, {v(vUL)}, {s(SS, 4)}, 0 offen offset:{CST * c} sc1")
    if cfg.hlate == 2: a_hload(a)
    def qload():
        for (vo, dst) in ((vD0, QT), (vD1, QT + 4096)):
            a(f"s_add_u32 m0, {s(sM0)}, {dst}\ns_nop 0\nbuffer_load_dwordx4 {v(vo)}, {s(SQ, 4)}, 0 offen lds")
    a(f"v_lshlrev_b32 {v(DP)}, 16, {v(vDD)}\nv_and_b32 {v(DP + 1)}, 0xffff0000, {v(vDD)}")
    for t in range(16): a(f"v_mul_f32 {v(UD + t)}, {v(UD + t)}, {v(DP + (t & 1))}")
    a(f"v_add_u32 {v(vPF)}, 4096, {v(vPF)}\ns_addk_i32 {s(sME)}, 4096\nv_add_u32 v10, 4096, v10")
    for c in range(2):
        a(f"s_waitcnt vmcnt({1 - c + (4 if cfg.hlate == 2 else 0)})\nds_write_b128 v2, {v(UT + 4 * c, 4)} offset:{UL + US * c + 512}")
    if cfg.hlate == 2:
        a("v_cmp_ne_u32 vcc, 0, v0\ns_waitcnt vmcnt(0)\ns_nop 0"); hprep(); hwrite()
    a("s_waitcnt lgkmcnt(0)\ns_barrier")
    stamp(5)
    ACC = 56
    fa = lambda st, p: (136 if st == 0 else 200) + 4 * p
    fb = lambda st, q: (168 + 4 * q) if st == 0 else (232 + 4 * q if q < 6 else 88 + 4 * (q - 6))
    def rdA(rr, p):
        return [f"ds_read_b64 {v(fa(rr & 1, p), 2)}, {v(vCA)} offset:{64 * rr + 512 * p}", f"ds_read_b64 {v(fa(rr & 1, p) + 2, 2)}, {v(vCA)} offset:{64 * rr + 512 * p + 8}"]
    def rdB(rr, q): return [f"ds_read_b128 {v(fb(rr & 1, q), 4)}, {v(vCB)} offset:{512 * q + 64 * (3 - rr)}"]
    if cfg.aprio != cfg.cprio: a(f"s_setprio {cfg.cprio}")
    first = rdA(0, 0) + sum((rdB(0, q) for q in range(8)), []) + sum((rdA(0, p) for p in range(1, 8)), [])
    a("\n".join(first[:12]))
    for rr in range(4):
        a.c("---- conv residue %d" % rr)
        if cfg.qat == rr: qload()
        if rr: a("s_waitcnt lgkmcnt(0)")
        pre = []
        if rr < 3:
            for p in range(8): pre += rdA(rr + 1, p) + rdB(rr + 1, p)
        n = 0
        for p in range(8):
            for i in range(p, 8):
                if rr == 0 and p == 0:
                    a("s_waitcnt lgkmcnt(%d)" % (9 - i + min(2 * i, 12)))
                if rr == 0 and p == 1 and i == 1: a("s_waitcnt lgkmcnt(0)")
                a(f"{MF16} {v(ACC + 4 * i, 4)}, {v(fa(rr & 1, p), 4)}, {v(fb(rr & 1, i - p), 4)}, {'0' if (rr == 0 and p == 0) else v(ACC + 4 * i, 4)}")
                if rr == 0 and p == 0:
                    a("\n".join(first[12 + 2 * i:14 + 2 * i]))
                else:
                    if n < len(pre): a(pre[n])
                    n += 1
    stamp(6)
    tp = cfg.aprio if cfg.tprio < 0 else cfg.tprio
    if tp != cfg.cprio: a(f"s_setprio {tp}")
    a(f"""s_barrier
    v_bfe_u32 v3, v0, 2, 2
    v_lshlrev_b32 v4, 1, v0
    v_xor_b32 v3, v3, v4
    v_lshlrev_b32 v3, 4, v3
    v_xor_b32 v4, 16, v3""")
    for i in range(8): a(f"ds_write_b128 {v(vRW)}, {v(ACC + 4 * i, 4)} offset:{1024 * i}")
    a("s_waitcnt %slgkmcnt(0)\ns_barrier" % ("" if cfg.qlatew else "vmcnt(0) "))
    R0 = 136
    for c in range(2):
        for rh in range(2):
            for hf in range(2): a(f"ds_read_b128 {v(R0 + 16 * c + 8 * rh + 4 * hf, 4)}, {v(3 + hf)} offset:{RB + 8192 * (2 * c + rh)}")
    YS = 48
    for c in range(2):
        a("s_waitcnt lgkmcnt(%d)" % (4 - 4 * c))
        for i in range(8): a(f"v_add_f32 {v(R0 + 16 * c + i)}, {v(R0 + 16 * c + i)}, {v(R0 + 16 * c + 8 + i)}")
        for i in range(4): a(f"v_cvt_pk_bf16_f32 {v(YS + 4 * c + i)}, {v(R0 + 16 * c + 2 * i)}, {v(R0 + 16 * c + 2 * i + 1)}")
        a(f"buffer_store_dwordx4 {v(YS + 4 * c, 4)}, {v(vUL)}, {s(SS, 4)}, {YO} offen offset:{CST * c}{YSC}")
    stamp(7)
    QP = 100
    def qread():
        for jj in range(8): a(f"ds_read_b32 {v(VR + jj)}, {v(vA0)} offset:{QT + jj * 128}")
    if not cfg.qlatew: qread()
    a(f"""v_lshrrev_b32 v5, 3, v0
    v_and_b32 v6, 7, v0
    v_xor_b32 v6, {s(sWV)}, v6
    v_lshlrev_b32 v6, 4, v6
    v_lshl_add_u32 v5, v5, 11, v6
    s_lshl_b32 {s(T1)}, {s(sJ)}, 17
    s_lshl_b32 {s(T2)}, {s(sG)}, 7
    s_add_u32 {s(T1)}, {s(T1)}, {s(T2)}
    v_add_u32 v5, {s(T1)}, v5
    v_xor_b32 v6, 64, v5
    v_add_u32 v6, 65536, v6""")
    publish()
    stamp(8)
    if cfg.qlatew: a("s_barrier"); qread()
    a("s_waitcnt lgkmcnt(0)")
    for jj in range(8): unpack(QP + 2 * jj, VR + jj)
    for t in range(16): a(f"v_mul_f32 {v(UD + t)}, {v(UD + t)}, {v(QP + t)}")
    g.poll_group("L_a_poll3", 2, vPF, 12, SWS, sTAGX, sTAG, sCNT, sTMO, sME, sMASK, cfg.aslp)
    stamp(9)
    YT, YP = 136, 144
    for c in range(2): a(f"buffer_load_dwordx4 {v(YT + 4 * c, 4)}, {v(vUS)}, {s(SS, 4)}, {YO} offen offset:{CST * c} sc1")
    for c in range(2):
        a(f"s_waitcnt vmcnt({1 - c})")
        for e in range(4):
            a(f"v_lshlrev_b32 {v(YP + 4 * e + c)}, 16, {v(YT + 4 * c + e)}\nv_and_b32 {v(YP + 4 * e + 2 + c)}, 0xffff0000, {v(YT + 4 * c + e)}")
    for t in range(8):
        for c in range(2): a(f"v_fmac_f32 {v(UD + 2 * t + c)}, {v(YP + 2 * t + c)}, {v(QP + 2 * t + c)}")
        a(f"v_cvt_pk_bf16_f32 {v(YT + t)}, {v(UD + 2 * t)}, {v(UD + 2 * t + 1)}\nds_write_b32 {v(vA0)}, {v(YT + t)} offset:{OT + 128 * t}")
    a("s_waitcnt lgkmcnt(0)\ns_barrier")
    stamp(10)
    for e in range(2): a(f"ds_read_b128 {v(YP + 4 * e, 4)}, v2 offset:{OT + 4096 * e}")
    for e in range(2): a(f"s_waitcnt lgkmcnt({1 - e})\nbuffer_store_dwordx4 {v(YP + 4 * e, 4)}, {v(5 + e)}, {s(SO, 4)}, 0 offen{cfg.aosc}")
    a(f"""s_or_b32 {s(T0)}, {s(sJ)}, {s(sWV)}
    s_cbranch_scc1 L_a_noepoch
    s_lshl2_add_u32 {s(T0)}, {s(sG)}, {EPA}
    v_mov_b32 v12, {s(T0)}
    v_mov_b32 v13, {s(sTAG)}
    s_mov_b64 exec, 1
    buffer_store_dword v13, v12, {s(SWS, 4)}, 0 offen
    s_mov_b64 exec, -1""")
    if cfg.wbl: a("s_waitcnt vmcnt(0)\nbuffer_wbl2 sc1")
    a.label("L_a_noepoch")
    g.stamp_flush(SWS, sWV)

def gen(cfg):
    g = G(cfg); a = g.a
    if cfg.pref == 2:
        a("""s_cmp_ge_u32 s2, 32
        s_cbranch_scc1 L_nopf
        s_getpc_b64 s[60:61]
        L_pc:
        s_lshr_b32 s3, s2, 3
        v_and_b32 v1, 0xcf, v0
        v_lshl_add_u32 v1, s3, 4, v1
        v_lshlrev_b32 v1, 7, v1
        v_min_u32 v1, L_hot_end-L_pc-4, v1
        s_mov_b64 exec, 0xffff
        global_load_dword v110, v1, s[60:61]
        s_mov_b64 exec, -1
        L_nopf:""")
    if cfg.afirst:
        a("s_cmp_ge_u32 s2, 512\ns_cbranch_scc1 L_end")
        if cfg.afirst == 2: a("s_xor_b32 s2, s2, 256")
        a("s_cmp_lt_u32 s2, 256\ns_cbranch_scc1 L_B")
        progA0(g)
        a.label("L_B")
    else: a("s_cmp_ge_u32 s2, 256\ns_cbranch_scc1 L_A")
    if cfg.only == "A": a("s_branch L_end")
    progB(g)
    progA(g)
    a.label("L_end")
    a("s_endpgm")
    g.flush_tails()
    a.lines += g.cold
    i = a.lines.index("L_b_slow:")
    j = a.lines.index("s_branch L_b_att_done", i)
    slowp = a.lines[i:j + 1]; del a.lines[i:j + 1]
    a.label("L_hot_end")
    a.lines += slowp
    return a

HERE = os.path.dirname(os.path.abspath(__file__))
HDR = open(os.path.join(HERE, "..", "cdna_kernels", NAME + ".s.ref")).read()
def full(cfg):
    a = gen(cfg)
    errs = check(a.lines)
    for e in errs: print(e, file=sys.stderr)
    out = HDR[:HDR.index("; Override launch")] + "; @launch grid=(512,1,1) block=(256,1,1) lds=81920\n"
    out += '.amdgcn_target "amdgcn-amd-amdhsa--gfx950"\n.text\n.globl %s_kernel\n.p2align 8\n.type %s_kernel,@function\n%s_kernel:\n' % (NAME, NAME, NAME)
    out += a.text() + HDR[HDR.index('.section .rodata'):]
    return out, errs

if __name__ == "__main__":
    cfg = Cfg()
    for x in sys.argv[2:]:
        k, val = x.split("=")
        assert hasattr(cfg, k), k
        setattr(cfg, k, eval(val))
    txt, errs = full(cfg)
    open(sys.argv[1], "w").write(txt)
    print("wrote", sys.argv[1], len(txt), "bytes;", len(errs), "hazards")
```
